```python
import torch

def _softmax(x, axis=-1):
    return torch.softmax(x, dim=axis)
def _gelu(x):
    return torch.nn.functional.gelu(x, approximate="tanh")
def _silu(x):
    return torch.nn.functional.silu(x)
def _sigmoid(x):
    return torch.sigmoid(x)
def _layernorm(x, axis=-1, eps=1e-5):
    m = x.mean(dim=axis, keepdim=True)
    v = x.var(dim=axis, keepdim=True, unbiased=False)
    return (x - m) / torch.sqrt(v + eps)
def _scatter_add(tgt, idx, src, axis=0):
    return tgt.clone().index_add_(axis, idx, src)
def _segment_sum(src, seg, n):
    out = torch.zeros((n,) + src.shape[1:], dtype=src.dtype)
    return out.index_add_(0, seg, src)
def _pad(x, pw):
    flat = tuple(v for pair in reversed(pw) for v in pair)
    return torch.nn.functional.pad(x, flat)

kernel_name = 'gated_mix__sliding_block_cached__glu_gated_bilinear__decode'

def setup_inputs():

    _w = (lambda a: (lambda t: t.to(torch.bfloat16) if t.is_floating_point() else t)(torch.as_tensor(a)))
    def _A_setup():
        B, Sq, D = 2, 1, 512
        Hq, Hkv, Sk, Dh = 32, 32, 4096, 128
        assert Hq % Hkv == 0, (Hq, Hkv)
        return {
            "x": _w((lambda *s: torch.randn(*s, dtype=torch.bfloat16) * 0.05)(B, Sq, D)),
            "k_cache": _w((lambda *s: torch.randn(*s, dtype=torch.bfloat16) * 6.4)(B, Hkv, Sk, Dh)),
            "v_cache": _w((lambda *s: torch.randn(*s, dtype=torch.bfloat16) * 0.05)(B, Hkv, Sk, Dh)),
            "wq": _w((lambda *s: torch.randn(*s, dtype=torch.bfloat16) * 6.4)(D, Hq * Dh) * (D ** -0.5)),
            "wo": _w((lambda *s: torch.randn(*s, dtype=torch.bfloat16) * 0.05)(Hq * Dh, D) * ((Hq * Dh) ** -0.5)),
        }
    _A_in = _A_setup()

    def _B_setup():
        B, S, D, F = 2, 1, 512, 1376
        return {
            "x": _w((lambda *s: torch.randn(*s, dtype=torch.bfloat16) * 0.05)(B, S, D)),
            "w_gate": _w((lambda *s: torch.randn(*s, dtype=torch.bfloat16) * 0.4)(D, F) * (D ** -0.5)),
            "w_up": _w((lambda *s: torch.randn(*s, dtype=torch.bfloat16) * 0.4)(D, F) * (D ** -0.5)),
            "w_down": _w((lambda *s: torch.randn(*s, dtype=torch.bfloat16) * 0.4)(F, D) * (F ** -0.5)),
        }
    _B_in = _B_setup()

    return {
        "A_x": _A_in["x"],
        "A_k_cache": _A_in["k_cache"],
        "A_v_cache": _A_in["v_cache"],
        "A_wq": _A_in["wq"],
        "A_wo": _A_in["wo"],
        "B_x": _B_in["x"],
        "B_w_gate": _B_in["w_gate"],
        "B_w_up": _B_in["w_up"],
        "B_w_down": _B_in["w_down"],
        "gate_w": _w((lambda *s: torch.randn(*s, dtype=torch.bfloat16) * 0.05)(512) * 16.0),
    }

def reference(A_x, A_k_cache, A_v_cache, A_wq, A_wo, B_x, B_w_gate, B_w_up, B_w_down, gate_w):
    def _A_ref(x, k_cache, v_cache, wq, wo):
        B, Sq, D = x.shape
        Hq, Dh = 32, 128
        Hkv, Sk = k_cache.shape[1], k_cache.shape[2]
        W = min(4096, max(256, Sk // 4))
        rep = Hq // Hkv
        q = (lambda x, *d: x.permute(*d))((x @ wq).reshape(B, Sq, Hq, Dh), 0, 2, 1, 3)
        k = (lambda x, n, axis: torch.repeat_interleave(x, n, dim=axis))(k_cache[:, :, Sk - W:, :], rep, axis=1)
        v = (lambda x, n, axis: torch.repeat_interleave(x, n, dim=axis))(v_cache[:, :, Sk - W:, :], rep, axis=1)
        scores = torch.einsum("bhqd,bhkd->bhqk", q, k) * (Dh ** -0.5)
        p = _softmax(scores, axis=-1)
        o = torch.einsum("bhqk,bhkd->bhqd", p, v)
        return (lambda x, *d: x.permute(*d))(o, 0, 2, 1, 3).reshape(B, Sq, Hq * Dh) @ wo

    def _B_ref(x, w_gate, w_up, w_down):
        g = torch.einsum("bsd,df->bsf", x, w_gate)
        u = torch.einsum("bsd,df->bsf", x, w_up)
        h = g * u
        return torch.einsum("bsf,fd->bsd", h, w_down)

    x = A_x
    g = _sigmoid((x * gate_w).sum(-1, keepdims=True))
    a = _A_ref(x, A_k_cache, A_v_cache, A_wq, A_wo)
    b = _B_ref(x, B_w_gate, B_w_up, B_w_down)
    return g * a + (1 - g) * b
```

```python
import re

TRANS = ('v_exp_f32','v_log_f32','v_rcp_f32','v_rsq_f32','v_sqrt_f32','v_sin_f32','v_cos_f32')

def regs_of(tok):
    tok = tok.strip()
    neg = tok.lstrip('-')
    m = re.fullmatch(r'abs\((.*)\)', neg)
    if m: neg = m.group(1)
    m = re.fullmatch(r'\|(.*)\|', neg)
    if m: neg = m.group(1)
    m = re.fullmatch(r'([vsa])(\d+)', neg)
    if m: return [(m.group(1), int(m.group(2)))]
    m = re.fullmatch(r'([vsa])\[(\d+):(\d+)\]', neg)
    if m: return [(m.group(1), k) for k in range(int(m.group(2)), int(m.group(3))+1)]
    if neg in ('vcc','vcc_lo','vcc_hi'): return [('vcc',0)]
    if neg in ('exec','exec_lo','exec_hi'): return [('exec',0)]
    if neg == 'm0': return [('m0',0)]
    return []

def split_ops(rest):
    out=[]; depth=0; cur=''
    for ch in rest:
        if ch in '[(': depth+=1
        if ch in '])': depth-=1
        if ch==',' and depth==0:
            out.append(cur); cur=''
        else: cur+=ch
    out.append(cur)
    return [o.strip() for o in out]

class Asm:
    def __init__(self):
        self.lines=[]
        self.pos=0
        self.rec={}
        self.snap={}
        self.vm=[]
        self.cond=None
        self.nops=0
        self.maxv=0; self.maxs=0
    def raw(self, t): self.lines.append(t)
    def c(self, t): self.lines.append('    ; '+t)
    def _need(self, kind, regs, need):
        worst=0
        for r in regs:
            p=self.rec.get((kind,r))
            if p is not None:
                have=self.pos-p-1
                worst=max(worst, need-have)
        return worst
    def nop(self, n):
        while n>0:
            k=min(n,16)
            self.lines.append('    s_nop %d'%(k-1)); self.pos+=k; n-=k; self.nops+=1
    def label(self, name):
        for (bp, rec) in self.snap.get(name, []):
            for k,p in rec.items():
                age=bp-p
                np_=self.pos-age-1+0
                np_=self.pos-age
                if self.rec.get(k,-10**9)<np_: self.rec[k]=np_
        self.lines.append(name+':')
    def I(self, text):
        text=text.strip()
        mn,_,rest=text.partition(' ')
        ops=split_ops(rest) if rest else []
        mods=''
        if ops:
            last=ops[-1]
            depth=0
            for idx,ch in enumerate(last):
                if ch in '[(': depth+=1
                if ch in '])': depth-=1
                if ch==' ' and depth==0:
                    mods=last[idx+1:]; last=last[:idx]; break
            ops[-1]=last
        R=[regs_of(o) for o in ops]
        for rl in R:
            for (k,n) in rl:
                if k=='v': self.maxv=max(self.maxv,n)
                if k=='s': self.maxs=max(self.maxs,n)
        is_mfma=mn.startswith('v_mfma')
        is_valu=mn.startswith('v_') and not is_mfma
        is_vmem=mn.startswith(('buffer_','global_'))
        is_ds=mn.startswith('ds_')
        is_dpp='_dpp' in mn
        writes=[]; reads=[]
        if is_mfma:
            writes=R[0]; reads=R[1]+R[2]+R[3]
        elif is_valu:
            if mn.startswith('v_cmp'):
                writes=R[0]; reads=sum(R[1:],[])
            elif mn.startswith(('v_permlane16_swap','v_permlane32_swap')):
                writes=R[0]+R[1]; reads=R[0]+R[1]
            elif mn.startswith(('v_add_co','v_sub_co','v_addc_co','v_subb_co')):
                writes=R[0]+R[1]; reads=sum(R[2:],[])
            else:
                writes=R[0]; reads=sum(R[1:],[])
                if mn.startswith(('v_fmac','v_dot2c')) or is_dpp: reads=reads+R[0]
                if mn.startswith('v_cndmask') and len(ops)==3: reads=reads+[('vcc',0)]
        elif is_vmem:
            if 'load' in mn and 'lds' not in mods.split() and '_lds_' not in mn:
                writes=R[0]; reads=sum(R[1:],[])
            elif 'atomic' in mn and 'sc0' in mods.split():
                writes=R[0]; reads=sum(R[1:],[])
            else:
                reads=sum(R,[])
        elif is_ds:
            if mn.startswith(('ds_read','ds_bpermute','ds_permute','ds_swizzle')):
                writes=R[0]; reads=sum(R[1:],[])
            else: reads=sum(R,[])
        else:
            if R:
                if mn.startswith(('s_cmp','s_cbranch','s_branch','s_waitcnt','s_nop','s_sleep','s_setprio','s_bitcmp')):
                    reads=sum(R,[])
                else:
                    writes=R[0]; reads=sum(R[1:],[])
        vr=[r for r in reads if r[0] in 'va']; vw=[r for r in writes if r[0] in 'va']
        sr=[r for r in reads if r[0] in ('s','vcc')]
        need=0
        if is_mfma:
            need=max(need,self._need('valu_w',vr,2))
            need=max(need,self._need('mfma_w',R[1]+R[2],8))
            cset=tuple(R[3])
            for r in R[3]:
                p=self.rec.get(('mfma_w',r))
                if p is not None and self.rec.get(('mfma_d',r))!=cset:
                    need=max(need,6-(self.pos-p-1))
            if tuple(R[0])!=cset:
                need=max(need,self._need('mfma_w',R[0],8))
        if is_valu:
            need=max(need,self._need('mfma_w',vr+vw,8))
            need=max(need,self._need('mfma_c',vw,3))
            need=max(need,self._need('st_data',vw,2))
            if is_dpp: need=max(need,self._need('valu_w',R[1] ,2))
            if mn.startswith('v_permlane'): need=max(need,self._need('valu_w',vr,2))
            if mn.startswith(('v_readlane','v_readfirstlane')): need=max(need,self._need('valu_w',vr,1))
            if not mn.startswith(TRANS): need=max(need,self._need('trans_w',vr,1))
            need=max(need,self._need('valu_sw',sr,2))
            if mn.startswith(('v_readlane','v_writelane')): need=max(need,self._need('valu_sw',sr,4))
        if is_vmem or is_ds:
            need=max(need,self._need('mfma_w',vr+vw,8))
            need=max(need,self._need('st_data',vw,1))
            if is_vmem: need=max(need,self._need('valu_sw',sr,5))
            if is_vmem and ('lds' in mods.split() or '_lds_' in mn): need=max(need,self._need('m0_w',[('m0',0)],1))
        if not (is_valu or is_mfma or is_vmem or is_ds):
            need=max(need,self._need('valu_sw',sr,1))
        if need>0: self.nop(need)
        self.lines.append('    '+text)
        p=self.pos
        if mn=='s_nop': self.pos+=int(ops[0])+1
        else: self.pos+=1
        if is_mfma:
            for r in writes:
                self.rec[('mfma_w',r)]=p; self.rec[('mfma_d',r)]=tuple(R[0])
            for r in R[3]: self.rec[('mfma_c',r)]=p
        if is_valu:
            for r in vw:
                self.rec[('valu_w',r)]=p
                if mn.startswith(TRANS): self.rec[('trans_w',r)]=p
                else: self.rec.pop(('trans_w',r),None)
                self.rec.pop(('mfma_w',r),None)
            for r in writes:
                if r[0] in ('s','vcc'): self.rec[('valu_sw',r)]=p
        if (is_vmem) and ('store' in mn) and (mn.endswith('x4') or mn.endswith('x3')):
            data = R[0] if mn.startswith('buffer') else R[1]
            for r in data: self.rec[('st_data',r)]=p
        if not is_valu and not is_mfma:
            for r in writes:
                if r==('m0',0): self.rec[('m0_w',r)]=p
                if r[0] in ('s','vcc'): self.rec.pop(('valu_sw',r),None)
        if mn.startswith(('s_cbranch','s_branch')):
            self.snap.setdefault(ops[0],[]).append((self.pos, {k:v for k,v in self.rec.items() if k[0]!='mfma_d'}))
    def VM(self, name, text):
        self.I(text)
        self.vm.append((name, self.cond))
    def wait_vm(self, name, extra=''):
        idx=max(i for i,(n,_) in enumerate(self.vm) if n==name)
        later=[c for (n,c) in self.vm[idx+1:] if c is None or c==self.cond]
        n=min(len(later),63)
        self.I('s_waitcnt vmcnt(%d)%s'%(n, (' '+extra) if extra else ''))
    def text(self): return '\n'.join(self.lines)+'\n'
```

```python
import sys
from asmlib import Asm

NAME='gated_mix__sliding_block_cached__glu_gated_bilinear__decode'
HDR=open('cdna_kernels/%s.s.ref'%NAME).read().split('; Override launch')[0]

def gen(stamp=False, nt_kv=True, nt_w=False, opts=None):
    opts=opts or {}
    a=Asm(); I=a.I
    KV=' nt' if nt_kv else ''
    WN=' nt' if nt_w else ''
    S_X,S_K,S_V,S_WQ,S_WO,S_WD,S_GW,S_OUT,S_WS = 8,12,16,20,24,28,32,36,40
    S_WG,S_WU = 44,46
    sTAG,sW,sH,sB,sP,sT0,sT1,sT2,sOFF,sCNT,sC1,sC2,sEX = 48,49,50,51,52,53,54,55,56,57,58,59,60
    sCB,sCC=62,63
    sST=64
    vTID=0; vL=1; vG=2; vJ=3
    vM=4
    vT=8
    vXQ=32
    vXF=40
    vGX=48
    vQB=56
    vACC=72
    vMX=88; vGATE=89; vO1=90; vO2=91
    vWQ=92
    vK=156
    vV=188
    vGU=220
    vWD=72
    def v(n,c=1): return 'v%d'%n if c==1 else 'v[%d:%d]'%(n,n+c-1)
    def s(n,c=1): return 's%d'%n if c==1 else 's[%d:%d]'%(n,n+c-1)
    L_QP=0; L_GP=4096; L_MX=8192; L_LW=8256; L_OP=8704; L_AP=12800+0; L_BP=32768
    L_AP=16384
    LDS_BYTES=65536
    W_ML=4096; W_AP=8192; W_FB=8192+256*4096; W_ST=W_FB+43*8192+4096
    W_END=W_ST+256*8*128
    nst=[0]
    def STAMP():
        if not stamp: return
        k=nst[0]; nst[0]+=1
        I('s_memrealtime %s'%s(sST+2*k,2))
    def DPP(op,d,x,y,ctrl): I('%s_dpp %s, %s, %s %s row_mask:0xf bank_mask:0xf'%(op,v(d),v(x),v(y),ctrl))
    def DPPM(d,x,ctrl): I('v_mov_b32_dpp %s, %s %s row_mask:0xf bank_mask:0xf'%(v(d),v(x),ctrl))

    I('s_cmp_ge_u32 s2, 256')
    I('s_cbranch_scc1 L_end')
    STAMP()
    for (r,off) in ((S_WQ,24),(S_X,0),(S_K,8),(S_V,16),(S_WG,48),(S_WU,56),(S_WD,64),(S_WS,96),(S_WO,32),(S_GW,72),(S_OUT,80)):
        I('s_load_dwordx2 %s, s[0:1], %d'%(s(r,2),off))
    for (r,n) in ((S_X,2048),(S_K,1<<26),(S_V,1<<26),(S_WQ,1<<22),(S_WO,1<<22),(S_WD,1376*1024),(S_GW,1024),(S_OUT,2048),(S_WS,W_END)):
        I('s_mov_b32 %s, 0x%x'%(s(r+2),n)); I('s_mov_b32 %s, 0x20000'%s(r+3))
    I('v_lshrrev_b32 v8, 6, v0')
    I('v_and_b32 %s, 63, v0'%v(vL))
    I('v_readfirstlane_b32 %s, v8'%s(sW))
    I('v_lshrrev_b32 %s, 4, %s'%(v(vG),v(vL)))
    I('v_and_b32 %s, 15, v0'%v(vJ))
    I('s_and_b32 %s, s2, 7'%s(sT0)); I('s_lshl_b32 %s, %s, 2'%(s(sH),s(sT0)))
    I('s_bfe_u32 %s, s2, 0x20003'%s(sT1)); I('s_add_u32 %s, %s, %s'%(s(sH),s(sH),s(sT1)))
    I('s_lshr_b32 %s, s2, 7'%s(sB))
    I('s_bfe_u32 %s, s2, 0x20005'%s(sT1))
    I('s_lshl_b32 %s, %s, 2'%(s(sP),s(sH))); I('s_add_u32 %s, %s, %s'%(s(sP),s(sP),s(sT1)))
    I('s_mov_b32 %s, %s'%(s(sCB),s(sB)))
    I('s_lshl_b32 %s, %s, 4'%(s(sCC),s(sT0))); I('s_bfe_u32 %s, s2, 0x40003'%s(sT2)); I('s_add_u32 %s, %s, %s'%(s(sCC),s(sCC),s(sT2)))
    I('s_lshl_b32 %s, %s, 6'%(s(sT0),s(sW)))
    I('v_lshl_add_u32 v9, %s, 4, %s'%(v(vG),s(sT0)))
    I('s_lshl_b32 %s, %s, 8'%(s(sT0),s(sH)))
    I('v_lshlrev_b32 v10, 13, v9')
    I('v_lshl_add_u32 v11, %s, 4, %s'%(v(vJ),s(sT0)))
    I('v_add_u32 v10, v10, v11')
    I('s_lshl_b32 %s, %s, 10'%(s(sT0),s(sB)))
    I('v_lshl_add_u32 v11, v9, 1, %s'%s(sT0))
    I('s_lshl_b32 %s, %s, 5'%(s(sT0),s(sB))); I('s_add_u32 %s, %s, %s'%(s(sT0),s(sT0),s(sH)))
    I('s_lshl_b32 %s, %s, 20'%(s(sT0),s(sT0)))
    I('s_lshl_b32 %s, %s, 16'%(s(sT1),s(sT1))); I('s_add_u32 %s, %s, %s'%(s(sT0),s(sT0),s(sT1)))
    I('s_lshl_b32 %s, %s, 13'%(s(sT1),s(sW))); I('s_add_u32 %s, %s, %s'%(s(sT0),s(sT0),s(sT1)))
    I('s_add_u32 %s, %s, 786432'%(s(sT2),s(sT0)))
    I('v_lshrrev_b32 v12, 2, %s'%v(vJ)); I('v_lshlrev_b32 v12, 8, v12')
    I('v_and_b32 v13, 3, v0'); I('v_lshl_add_u32 v13, %s, 2, v13'%v(vG))
    I('v_lshl_add_u32 v12, v13, 4, v12'); I('v_add_u32 v12, %s, v12'%s(sT2))
    I('v_lshl_add_u32 v13, %s, 4, %s'%(v(vL),s(sT2)))
    I('v_lshlrev_b32 v15, 4, %s'%v(vL))
    I('s_lshl_b32 %s, %s, 10'%(s(sT0),s(sCB)))
    I('v_add_u32 v14, %s, v15'%s(sT0))
    I('s_mov_b32 %s, 4096'%s(sC1))
    I('s_cmp_lt_u32 s2, 43')
    I('s_waitcnt lgkmcnt(0)')
    I('s_load_dword %s, %s, 0'%(s(sTAG),s(S_WS,2)))
    STAMP()
    I('s_cbranch_scc0 L_noffn0')
    a.cond='ffn'
    I('v_bfe_u32 v16, %s, 2, 1'%v(vJ)); I('v_lshlrev_b32 v16, 10, v16'); I('v_lshl_add_u32 v16, v9, 1, v16')
    a.VM('xf0','buffer_load_dwordx4 %s, v16, %s, 0 offen'%(v(vXF,4),s(S_X,4)))
    a.VM('xf1','buffer_load_dwordx4 %s, v16, %s, 0 offen offset:16'%(v(vXF+4,4),s(S_X,4)))
    I('v_cmp_gt_u32 vcc, 8, %s'%v(vJ))
    I('v_mov_b32 v18, %s'%s(S_WU)); I('v_mov_b32 v19, %s'%s(S_WU+1))
    I('v_mov_b32 v20, %s'%s(S_WG)); I('v_mov_b32 v21, %s'%s(S_WG+1))
    I('v_cndmask_b32 v18, v18, v20, vcc'); I('v_cndmask_b32 v19, v19, v21, vcc')
    I('v_add_u32 v20, 1, v9'); I('v_mul_u32_u24 v20, 2752, v20')
    I('v_and_b32 v21, 7, v0'); I('v_lshl_add_u32 v20, v21, 3, v20')
    I('s_lshl_b32 %s, s2, 6'%s(sT0)); I('v_add_u32 v20, %s, v20'%s(sT0))
    I('v_add_co_u32 v18, vcc, v18, v20'); I('v_addc_co_u32 v19, vcc, 0, v19, vcc')
    I('s_mov_b32 %s, %d'%(s(sT0),3*2752)); I('s_mov_b32 %s, 0'%s(sT1))
    assert sT0%2==1 or True
    for t in range(16):
        k=t%3
        if t and k==0:
            I('v_add_co_u32 v18, vcc, %d, v18'%(3*2752)); I('v_addc_co_u32 v19, vcc, 0, v19, vcc')
        a.VM('gu%d'%t,'global_load_dwordx2 %s, v[18:19], off offset:%d%s'%(v(vGU+2*t,2),(k-1)*2752,WN))
    I('s_lshl_b32 %s, s2, 5'%s(sT0)); I('s_lshl_b32 %s, %s, 2'%(s(sT1),s(sW))); I('s_add_u32 %s, %s, %s'%(s(sT0),s(sT0),s(sT1)))
    I('v_add_u32 v16, %s, %s'%(s(sT0),v(vG))); I('v_lshlrev_b32 v16, 10, v16'); I('v_lshl_add_u32 v16, %s, 4, v16'%v(vJ))
    for cb in range(4):
        a.VM('wd%d'%cb,'buffer_load_dwordx4 %s, v16, %s, 0 offen offset:%d%s'%(v(vWD+4*cb,4),s(S_WD,4),cb*256,WN))
    a.cond=None
    a.label('L_noffn0')
    a.VM('xq0','buffer_load_dwordx4 %s, v11, %s, 0 offen'%(v(vXQ,4),s(S_X,4)))
    a.VM('xq1','buffer_load_dwordx4 %s, v11, %s, 0 offen offset:16'%(v(vXQ+4,4),s(S_X,4)))
    I('s_mov_b32 %s, 0'%s(sOFF))
    for t in range(16):
        a.VM('wq%d'%t,'buffer_load_dwordx4 %s, v10, %s, %s offen'%(v(vWQ+4*t,4),s(S_WQ,4),s(sOFF)))
        if t<15: I('s_add_u32 %s, %s, 8192'%(s(sOFF),s(sOFF)))
    for n in range(8):
        a.VM('k%d'%n,'buffer_load_dwordx4 %s, v12, %s, %s offen offset:%d%s'%(v(vK+4*n,4),s(S_K,4),s(sC1) if n>=4 else '0',(n&3)*1024,KV))
    for n in range(8):
        a.VM('v%d'%n,'buffer_load_dwordx4 %s, v13, %s, %s offen offset:%d%s'%(v(vV+4*n,4),s(S_V,4),s(sC1) if n>=4 else '0',(n&3)*1024,KV))
    a.VM('gx','buffer_load_dwordx4 %s, v14, %s, 0 offen'%(v(vGX,4),s(S_X,4)))
    a.VM('gw','buffer_load_dwordx4 %s, v15, %s, 0 offen'%(v(vGX+4,4),s(S_GW,4)))
    STAMP()
    I('v_and_b32 v16, 1, v0'); I('v_lshlrev_b32 v16, 4, v16'); I('v_mov_b32 v17, 0xffff'); I('v_lshlrev_b32 v16, v16, v17')
    I('v_bfe_u32 v17, v0, 1, 2')
    for r in range(4):
        I('v_cmp_eq_u32 vcc, %d, v17'%r); I('v_cndmask_b32 %s, 0, v16, vcc'%v(vM+r))
    I('v_mov_b32 v18, 0x0c0c0c0c'); I('s_mov_b32 %s, 0x01000100'%s(sT0)); I('s_mov_b32 %s, 0x03020302'%s(sT1))
    for r in range(4):
        I('v_bfi_b32 %s, %s, %s, v18'%(v(20+r),v(vM+r),s(sT0)))
        I('v_bfi_b32 %s, %s, %s, v18'%(v(24+r),v(vM+r),s(sT1)))
    I('s_lshl_b32 %s, %s, 7'%(s(sT2),s(sH))); I('s_lshl_b32 %s, %s, 4'%(s(sOFF),s(sW))); I('s_add_u32 %s, %s, %s'%(s(sT2),s(sT2),s(sOFF)))
    I('v_lshl_add_u32 v9, %s, 2, %s'%(v(vG),s(sT2))); I('v_lshlrev_b32 v9, 10, v9'); I('v_lshl_add_u32 v9, %s, 4, v9'%v(vJ))
    I('v_and_b32 v10, 1, %s'%v(vG)); I('v_lshlrev_b32 v10, 4, v10'); I('v_lshl_add_u32 v10, %s, 5, v10'%v(vJ))
    I('s_lshl_b32 %s, %s, 9'%(s(sT2),s(sW))); I('v_add_u32 v10, %s, v10'%s(sT2))
    I('s_cmp_lt_u32 s2, 43'); I('s_cbranch_scc0 L_noffn1')
    a.cond='ffn'
    I('v_bfe_u32 v17, v0, 1, 1')
    for r in range(2):
        I('v_cmp_eq_u32 vcc, %d, v17'%r); I('v_cndmask_b32 v11, 0, v16, vcc')
        I('v_bfi_b32 %s, v11, %s, v18'%(v(28+r),s(sT0)))
        I('v_bfi_b32 %s, v11, %s, v18'%(v(30+r),s(sT1)))
    a.wait_vm('xf1')
    for t in range(16):
        ar=vQB+4+2*(t%6)
        for r in range(2):
            I('v_perm_b32 %s, %s, %s, %s'%(v(ar+r),v(vXF+t//2),v(vXF+t//2),v((30 if t&1 else 28)+r)))
        if t%4==0: a.wait_vm('gu%d'%min(t+3,15))
        I('v_mfma_f32_16x16x16_bf16 %s, %s, %s, %s'%(v(vQB,4),v(ar,2),v(vGU+2*t,2),'0' if t==0 else v(vQB,4)))
    I('v_lshl_add_u32 v11, %s, 4, %s'%(v(vL),s(sT2)))
    I('s_mov_b64 exec, 0xffffffff')
    I('ds_write_b128 v11, %s offset:%d'%(v(vQB,4),L_GP))
    I('s_mov_b64 exec, -1')
    a.cond=None
    a.label('L_noffn1')
    a.wait_vm('xq1')
    QA=vQB+4
    for t in range(16):
        ar=QA+4*(t%3)
        for r in range(4):
            I('v_perm_b32 %s, %s, %s, %s'%(v(ar+r),v(vXQ+t//2),v(vXQ+t//2),v((24 if t&1 else 20)+r)))
        if t%2==0: a.wait_vm('wq%d'%(t+1))
        I('v_mfma_f32_16x16x32_bf16 v[12:15], %s, %s, %s'%(v(ar,4),v(vWQ+4*t,4),'0' if t==0 else 'v[12:15]'))
    STAMP()
    for t in range(4):
        for cb in range(4):
            a.VM('wo%d'%(t*4+cb),'buffer_load_dwordx4 %s, v9, %s, 0 offen offset:%d'%(v(vWQ+16*t+4*cb,4),s(S_WO,4),t*1024+cb*256))
    I('s_mov_b64 exec, 0xffffffff')
    I('ds_write_b128 v10, v[12:15] offset:%d'%L_QP)
    I('s_mov_b64 exec, -1')
    I('v_lshrrev_b32 v11, 2, %s'%v(vJ)); I('v_lshlrev_b32 v11, 10, v11')
    I('v_and_b32 v12, 3, v0') ;
    I('v_lshl_add_u32 v12, %s, 2, v12'%v(vG)); I('v_lshl_add_u32 v11, v12, 5, v11')
    I('s_waitcnt lgkmcnt(0)')
    I('s_add_u32 %s, %s, 0x9e3779b9'%(s(sTAG),s(sTAG)))
    I('s_barrier')
    I('ds_read_b128 v[16:19], v11 offset:%d'%(L_QP))
    I('ds_read_b128 v[20:23], v11 offset:%d'%(L_QP+16))
    I('ds_read_b128 v[24:27], v11 offset:%d'%(L_QP+512))
    I('ds_read_b128 v[28:31], v11 offset:%d'%(L_QP+528))
    I('v_lshrrev_b32 v12, 2, %s'%v(vJ))
    I('s_waitcnt lgkmcnt(0)')
    for k in range(8): I('v_add_f32 %s, %s, %s'%(v(16+k),v(16+k),v(24+k)))
    for k in range(8): DPP('v_add_f32',16+k,16+k,16+k,'row_ror:4')
    for k in range(8): DPP('v_add_f32',16+k,16+k,16+k,'row_ror:8')
    for k in range(4): I('v_cvt_pk_bf16_f32 %s, %s, %s'%(v(24+k),v(16+2*k),v(17+2*k)))
    for u in range(4):
        I('v_cmp_eq_u32 vcc, %d, v12'%u)
        for k in range(4): I('v_cndmask_b32 %s, 0, %s, vcc'%(v(vQB+4*u+k),v(24+k)))
    STAMP()
    I('s_cmp_lt_u32 s2, 43'); I('s_cbranch_scc0 L_noffn2')
    a.cond='ffn'
    I('v_and_b32 v11, 7, v0'); I('v_lshlrev_b32 v11, 9, v11'); I('v_bfe_u32 v12, v0, 3, 1'); I('v_lshl_add_u32 v11, v12, 8, v11')
    I('v_lshl_add_u32 v11, %s, 2, v11'%v(vG)); I('s_lshl_b32 %s, %s, 4'%(s(sT0),s(sW))); I('s_add_u32 %s, %s, %d'%(s(sT0),s(sT0),L_GP))
    I('v_add_u32 v11, %s, v11'%s(sT0))
    I('ds_read2_b32 v[16:17], v11 offset0:0 offset1:32')
    I('s_waitcnt lgkmcnt(0)')
    for ctrl in ('quad_perm:[1,0,3,2]','quad_perm:[2,3,0,1]','row_half_mirror'):
        for k in range(2): DPP('v_add_f32',16+k,16+k,16+k,ctrl)
    I('v_cvt_pk_bf16_f32 v16, v16, v17')
    I('v_lshlrev_b32 v17, 16, v16'); I('v_and_b32 v16, 0xffff0000, v16'); I('v_mul_f32 v16, v16, v17')
    I('v_cvt_pk_bf16_f32 v16, v16, v16')
    for r in range(4): I('v_and_b32 %s, v16, %s'%(v(20+r),v(vM+r)))
    a.wait_vm('wd3')
    for cb in range(4):
        I('v_mfma_f32_16x16x32_bf16 %s, v[20:23], %s, 0'%(v(vGU+4*cb,4),v(vWD+4*cb,4)))
    I('v_lshrrev_b32 v11, 1, %s'%v(vG)); I('v_lshlrev_b32 v11, 11, v11')
    I('v_and_b32 v12, 511, v10'); I('v_add_u32 v11, v11, v12')
    I('s_lshl_b32 %s, %s, 12'%(s(sT0),s(sW))); I('v_add_u32 v11, %s, v11'%s(sT0))
    for cb in range(4):
        I('ds_write_b128 v11, %s offset:%d'%(v(vGU+4*cb,4),L_BP+cb*512))
    I('v_lshlrev_b32 v11, 3, v0')
    I('s_lshl_b32 %s, s2, 13'%s(sT0)); I('s_add_u32 %s, %s, %d'%(s(sT0),s(sT0),W_FB))
    I('v_lshlrev_b32 v12, 4, v0')
    I('s_waitcnt lgkmcnt(0)'); I('s_barrier')
    for w in range(8): I('ds_read_b64 %s, v11 offset:%d'%(v(16+2*w,2),L_BP+w*4096))
    I('s_waitcnt lgkmcnt(0)')
    for (x,y) in ((16,24),(18,26),(20,28),(22,30),(16,20),(18,22),(16,18)):
        I('v_pk_add_f32 %s, %s, %s'%(v(x,2),v(x,2),v(y,2)))
    I('v_mov_b32 v18, v17'); I('v_mov_b32 v17, %s'%s(sTAG)); I('v_mov_b32 v19, %s'%s(sTAG))
    a.VM('fbst','buffer_store_dwordx4 v[16:19], v12, %s, %s offen sc1'%(s(S_WS,4),s(sT0)))
    a.cond=None
    a.label('L_noffn2')
    for n in range(8):
        if n%4==0: a.wait_vm('k%d'%(n+3))
        d=16+4*(n>>2)
        I('v_mfma_f32_16x16x32_bf16 %s, %s, %s, %s'%(v(d,4),v(vK+4*n,4),v(vQB+4*(n&3),4),'0' if n%4==0 else v(d,4)))
    STAMP()
    I('s_mov_b32 %s, 0x3db504f3'%s(sC1))
    I('s_mov_b32 %s, 0x3fb8aa3b'%s(sC2))
    for G in range(2): DPPM(24+G,16+4*G,'quad_perm:[0,0,0,0]')
    for r in range(1,4):
        for G in range(2): DPP('v_add_f32',24+G,16+4*G+r,24+G,'quad_perm:[%d,%d,%d,%d]'%(r,r,r,r))
    I('v_cvt_pk_bf16_f32 v24, v24, v25')
    I('v_and_b32 v25, 0xffff0000, v24'); I('v_lshlrev_b32 v24, 16, v24')
    I('v_mul_f32 v24, %s, v24'%s(sC1)); I('v_mul_f32 v25, %s, v25'%s(sC1))
    I('v_cvt_pk_bf16_f32 v24, v24, v25')
    I('v_and_b32 v25, 0xffff0000, v24'); I('v_lshlrev_b32 v24, 16, v24')
    I('v_max_f32 v26, v24, v25')
    DPP('v_max_f32',26,26,26,'row_ror:4'); DPP('v_max_f32',26,26,26,'row_ror:8')
    I('v_mov_b32 v27, v26'); I('v_permlane16_swap_b32 v26, v27'); I('v_max_f32 v26, v26, v27')
    I('v_mov_b32 v27, v26'); I('v_permlane32_swap_b32 v26, v27'); I('v_max_f32 v26, v26, v27')
    I('s_lshl_b32 %s, %s, 2'%(s(sT0),s(sW))); I('v_mov_b32 v11, %s'%s(sT0)); I('v_mov_b32 v12, 0')
    I('s_mov_b64 exec, 1')
    I('ds_write_b32 v11, v26 offset:%d'%L_MX)
    I('s_mov_b64 exec, -1')
    I('s_waitcnt lgkmcnt(0)'); I('s_barrier')
    I('ds_read_b128 v[16:19], v12 offset:%d'%L_MX); I('ds_read_b128 v[20:23], v12 offset:%d'%(L_MX+16))
    I('s_waitcnt lgkmcnt(0)')
    I('v_max3_f32 v16, v16, v17, v18'); I('v_max3_f32 v20, v20, v21, v22'); I('v_max3_f32 v16, v16, v19, v23'); I('v_max_f32 %s, v16, v20'%v(vMX))
    I('v_sub_f32 v24, v24, %s'%v(vMX)); I('v_sub_f32 v25, v25, %s'%v(vMX))
    I('v_mul_f32 v24, %s, v24'%s(sC2)); I('v_mul_f32 v25, %s, v25'%s(sC2))
    I('v_exp_f32 v24, v24'); I('v_exp_f32 v25, v25')
    I('v_cvt_pk_bf16_f32 v28, v24, v24'); I('v_cvt_pk_bf16_f32 v29, v25, v25')
    I('v_add_f32 v26, v24, v25')
    for n in range(8):
        for r in range(4):
            DPP('v_and_b32',vK+4*n+r,28+(n>>2),vM+r,'row_newbcast:%d'%(4*(n&3)))
    DPP('v_add_f32',26,26,26,'row_ror:4'); DPP('v_add_f32',26,26,26,'row_ror:8')
    I('v_mov_b32 v27, v26'); I('v_permlane16_swap_b32 v26, v27'); I('v_add_f32 v26, v26, v27')
    I('v_mov_b32 v27, v26'); I('v_permlane32_swap_b32 v26, v27'); I('v_add_f32 v26, v26, v27')
    I('s_mov_b64 exec, 1')
    I('ds_write_b32 v11, v26 offset:%d'%L_LW)
    I('s_mov_b64 exec, -1')
    I('v_and_b32 v11, 7, v0'); I('v_lshlrev_b32 v11, 9, v11'); I('v_lshl_add_u32 v11, %s, 4, v11'%v(vG))
    I('s_lshl_b32 %s, %s, 6'%(s(sT0),s(sW))); I('v_add_u32 v11, %s, v11'%s(sT0))
    STAMP()
    for n in range(8):
        a.wait_vm('v%d'%n)
        I('v_mfma_f32_16x16x32_bf16 v[16:19], %s, %s, %s'%(v(vK+4*n,4),v(vV+4*n,4),'0' if n==0 else 'v[16:19]'))
    STAMP()
    I('s_mov_b64 exec, 0xffffffff')
    I('ds_write_b128 v10, v[16:19] offset:%d'%L_OP)
    I('s_mov_b64 exec, -1')
    I('s_waitcnt lgkmcnt(0)'); I('s_barrier')
    I('ds_read_b128 v[16:19], v11 offset:%d'%L_OP)
    I('s_cmp_eq_u32 %s, 7'%s(sW)); I('s_cbranch_scc0 L_noml')
    a.cond='ml'
    I('ds_read_b128 v[20:23], v12 offset:%d'%L_LW); I('ds_read_b128 v[24:27], v12 offset:%d'%(L_LW+16))
    I('s_lshl_b32 %s, %s, 7'%(s(sT0),s(sB))); I('s_add_u32 %s, %s, %s'%(s(sT0),s(sT0),s(sP))); I('s_lshl_b32 %s, %s, 4'%(s(sT0),s(sT0)))
    I('s_add_u32 %s, %s, %d'%(s(sT0),s(sT0),W_ML))
    I('s_waitcnt lgkmcnt(0)')
    I('v_pk_add_f32 v[20:21], v[20:21], v[24:25]'); I('v_pk_add_f32 v[22:23], v[22:23], v[26:27]')
    I('v_pk_add_f32 v[22:23], v[20:21], v[22:23]'); I('v_add_f32 v22, v22, v23')
    I('v_mov_b32 v20, %s'%v(vMX)); I('v_mov_b32 v21, %s'%s(sTAG)); I('v_mov_b32 v23, %s'%s(sTAG))
    I('s_mov_b64 exec, 1')
    a.VM('mlst','buffer_store_dwordx4 v[20:23], v12, %s, %s offen sc1'%(s(S_WS,4),s(sT0)))
    I('s_mov_b64 exec, -1')
    a.cond=None
    a.label('L_noml')
    I('s_waitcnt lgkmcnt(0)')
    for ctrl in ('quad_perm:[1,0,3,2]','quad_perm:[2,3,0,1]','row_half_mirror'):
        for k in range(4): DPP('v_add_f32',16+k,16+k,16+k,ctrl)
    for k in range(4): I('v_cvt_pk_bf16_f32 %s, %s, %s'%(v(16+k),v(16+k),v(16+k)))
    for t in range(4):
        for r in range(4): I('v_and_b32 %s, %s, %s'%(v(vK+4*t+r),v(16+t),v(vM+r)))
    a.wait_vm('wo15')
    for t in range(4):
        for cb in range(4):
            I('v_mfma_f32_16x16x32_bf16 %s, %s, %s, %s'%(v(vACC+4*cb,4),v(vK+4*t,4),v(vWQ+16*t+4*cb,4),'0' if t==0 else v(vACC+4*cb,4)))
    I('v_and_b32 v11, 511, v10'); I('s_lshl_b32 %s, %s, 11'%(s(sT0),s(sW))); I('v_add_u32 v11, %s, v11'%s(sT0))
    I('s_mov_b64 exec, 0xffffffff')
    for cb in range(4): I('ds_write_b128 v11, %s offset:%d'%(v(vACC+4*cb,4),L_AP+cb*512))
    I('s_mov_b64 exec, -1')
    I('v_lshlrev_b32 v11, 3, v0'); I('v_lshlrev_b32 v12, 4, v0')
    I('s_lshl_b32 %s, %s, 7'%(s(sT0),s(sB))); I('s_add_u32 %s, %s, %s'%(s(sT0),s(sT0),s(sP))); I('s_lshl_b32 %s, %s, 12'%(s(sT0),s(sT0)))
    I('s_add_u32 %s, %s, %d'%(s(sT0),s(sT0),W_AP))
    I('s_waitcnt lgkmcnt(0)'); I('s_barrier')
    STAMP()
    I('s_cmp_lt_u32 %s, 4'%s(sW)); I('s_cbranch_scc0 L_cons')
    for w in range(8): I('ds_read_b64 %s, v11 offset:%d'%(v(16+2*w,2),L_AP+w*2048))
    I('s_waitcnt lgkmcnt(0)')
    for (x,y) in ((16,24),(18,26),(20,28),(22,30),(16,20),(18,22),(16,18)):
        I('v_pk_add_f32 %s, %s, %s'%(v(x,2),v(x,2),v(y,2)))
    I('v_mov_b32 v18, v17'); I('v_mov_b32 v17, %s'%s(sTAG)); I('v_mov_b32 v19, %s'%s(sTAG))
    I('buffer_store_dwordx4 v[16:19], v12, %s, %s offen sc1'%(s(S_WS,4),s(sT0)))
    I('s_branch L_fin')
    a.label('L_cons')
    I('s_cmp_eq_u32 %s, 4'%s(sW)); I('s_cbranch_scc0 L_fin')
    I('v_lshlrev_b32 v11, 4, %s'%v(vL)); I('v_lshlrev_b32 v12, 12, %s'%v(vL))
    I('v_min_u32 v13, 42, %s'%v(vL)); I('v_lshlrev_b32 v13, 13, v13')
    sML,sA0,sA1,sFB=sT0,sT1,sT2,sOFF
    I('s_lshl_b32 %s, %s, 11'%(s(sML),s(sCB))); I('s_add_u32 %s, %s, %d'%(s(sML),s(sML),W_ML))
    I('s_lshl_b32 %s, %s, 19'%(s(sA0),s(sCB))); I('s_lshl_b32 %s, %s, 5'%(s(sC1),s(sCC))); I('s_add_u32 %s, %s, %s'%(s(sA0),s(sA0),s(sC1)))
    I('s_add_u32 %s, %s, %d'%(s(sA0),s(sA0),W_AP)); I('s_add_u32 %s, %s, %d'%(s(sA1),s(sA0),64*4096))
    I('s_lshl_b32 %s, %s, 12'%(s(sFB),s(sCB))); I('s_add_u32 %s, %s, %s'%(s(sFB),s(sFB),s(sC1))); I('s_add_u32 %s, %s, %d'%(s(sFB),s(sFB),W_FB))
    I('s_mov_b32 %s, 0'%s(sCNT))
    P=vWQ
    def poll_issue():
        I('buffer_load_dwordx4 %s, v11, %s, %s offen sc1'%(v(P,4),s(S_WS,4),s(sML)))
        I('buffer_load_dwordx4 %s, v11, %s, %s offen offset:1024 sc1'%(v(P+4,4),s(S_WS,4),s(sML)))
        I('buffer_load_dwordx4 %s, v12, %s, %s offen sc1'%(v(P+8,4),s(S_WS,4),s(sA0)))
        I('buffer_load_dwordx4 %s, v12, %s, %s offen offset:16 sc1'%(v(P+12,4),s(S_WS,4),s(sA0)))
        I('buffer_load_dwordx4 %s, v12, %s, %s offen sc1'%(v(P+16,4),s(S_WS,4),s(sA1)))
        I('buffer_load_dwordx4 %s, v12, %s, %s offen offset:16 sc1'%(v(P+20,4),s(S_WS,4),s(sA1)))
        I('buffer_load_dwordx4 %s, v13, %s, %s offen sc1'%(v(P+24,4),s(S_WS,4),s(sFB)))
        I('buffer_load_dwordx4 %s, v13, %s, %s offen offset:16 sc1'%(v(P+28,4),s(S_WS,4),s(sFB)))
    poll_issue()
    for k in range(4):
        I('v_lshlrev_b32 v16, 16, %s'%v(vGX+k)); I('v_and_b32 v17, 0xffff0000, %s'%v(vGX+k))
        I('v_lshlrev_b32 v18, 16, %s'%v(vGX+4+k)); I('v_and_b32 v19, 0xffff0000, %s'%v(vGX+4+k))
        I('v_mul_f32 v16, v16, v18'); I('v_mul_f32 v17, v17, v19')
        I('v_cvt_pk_bf16_f32 v16, v16, v17')
        I('v_and_b32 v17, 0xffff0000, v16'); I('v_lshlrev_b32 v16, 16, v16')
        if k==0: I('v_add_f32 v20, v16, v17')
        else: I('v_add_f32 v16, v16, v17'); I('v_add_f32 v20, v20, v16')
    def allreduce(regs, op='v_add_f32', tmp=21):
        for ctrl in ('quad_perm:[1,0,3,2]','quad_perm:[2,3,0,1]','row_half_mirror','row_mirror'):
            for r in regs: DPP(op,r,r,r,ctrl)
        for sw in ('v_permlane16_swap_b32','v_permlane32_swap_b32'):
            for k,r in enumerate(regs): I('v_mov_b32 %s, %s'%(v(tmp+k),v(r)))
            for k,r in enumerate(regs): I('%s %s, %s'%(sw,v(r),v(tmp+k)))
            for k,r in enumerate(regs): I('%s %s, %s, %s'%(op,v(r),v(r),v(tmp+k)))
    allreduce([20])
    I('v_cvt_pk_bf16_f32 v20, v20, v20'); I('v_lshlrev_b32 v20, 16, v20')
    I('v_mul_f32 v20, %s, v20'%s(sC2)); I('v_exp_f32 v20, -v20'); I('v_add_f32 v20, 1.0, v20'); I('v_rcp_f32 v20, v20')
    I('v_cvt_pk_bf16_f32 v20, v20, v20'); I('v_lshlrev_b32 %s, 16, v20'%v(vGATE))
    I('v_sub_f32 v20, 1.0, %s'%v(vGATE)); I('v_cvt_pk_bf16_f32 v20, v20, v20'); I('v_lshlrev_b32 %s, 16, v20'%v(vO1))
    I('v_cmp_gt_u32 vcc, 43, %s'%v(vL)); I('v_cndmask_b32 %s, 0, 1.0, vcc'%v(vO2))
    I('s_branch L_pchk')
    a.label('L_poll')
    I('s_add_u32 %s, %s, 1'%(s(sCNT),s(sCNT))); I('s_cmp_gt_u32 %s, 200000'%s(sCNT)); I('s_cbranch_scc1 L_fin')
    poll_issue()
    a.label('L_pchk')
    I('s_waitcnt vmcnt(0)')
    I('v_xor_b32 v16, %s, %s'%(s(sTAG),v(P+1)))
    I('v_xor_b32 v17, %s, %s'%(s(sTAG),v(P+3)))
    for k in range(1,8):
        I('v_bitop3_b32 v16, %s, %s, v16 bitop3:0xbe'%(v(P+4*k+1),s(sTAG)))
        I('v_bitop3_b32 v17, %s, %s, v17 bitop3:0xbe'%(v(P+4*k+3),s(sTAG)))
    I('v_or_b32 v16, v16, v17')
    I('v_cmp_ne_u32 vcc, 0, v16')
    I('s_nop 4')
    I('s_cbranch_vccnz L_poll')
    STAMP()
    for k in range(2): DPP('v_max_f32',16+k,P+4*k,P+4*k,'quad_perm:[1,0,3,2]')
    for k in range(2): DPP('v_max_f32',16+k,16+k,16+k,'quad_perm:[2,3,0,1]')
    for k in range(2): I('v_sub_f32 %s, %s, %s'%(v(16+k),v(P+4*k),v(16+k)))
    for k in range(2): I('v_mul_f32 %s, %s, %s'%(v(16+k),s(sC2),v(16+k)))
    for k in range(2): I('v_exp_f32 %s, %s'%(v(16+k),v(16+k)))
    for k in range(2): I('v_mul_f32 %s, %s, %s'%(v(18+k),v(16+k),v(P+4*k+2)))
    for k in range(2): DPP('v_add_f32',18+k,18+k,18+k,'quad_perm:[1,0,3,2]')
    for k in range(2): DPP('v_add_f32',18+k,18+k,18+k,'quad_perm:[2,3,0,1]')
    for k in range(2): I('v_rcp_f32 %s, %s'%(v(18+k),v(18+k)))
    for c in range(4): I('v_mul_f32 %s, %s, %s'%(v(28+c),v(vO2),v(P+24+2*c)))
    for k in range(2): I('v_mul_f32 %s, %s, %s'%(v(16+k),v(16+k),v(18+k)))
    for c in range(4): I('v_mul_f32 %s, v16, %s'%(v(24+c),v(P+8+2*c)))
    for c in range(4): I('v_fmac_f32 %s, v17, %s'%(v(24+c),v(P+16+2*c)))
    allreduce(list(range(24,32)), tmp=vK)
    for c in range(4): I('v_cvt_pk_bf16_f32 %s, %s, %s'%(v(24+c),v(24+c),v(28+c)))
    for c in range(4): I('v_and_b32 %s, 0xffff0000, %s'%(v(28+c),v(24+c)))
    for c in range(4): I('v_lshlrev_b32 %s, 16, %s'%(v(24+c),v(24+c)))
    for c in range(4): I('v_mul_f32 %s, %s, %s'%(v(24+c),v(vGATE),v(24+c)))
    for c in range(4): I('v_mul_f32 %s, %s, %s'%(v(28+c),v(vO1),v(28+c)))
    for c in range(4): I('v_cvt_pk_bf16_f32 %s, %s, %s'%(v(24+c),v(24+c),v(28+c)))
    for c in range(4): I('v_and_b32 %s, 0xffff0000, %s'%(v(28+c),v(24+c)))
    for c in range(4): I('v_lshlrev_b32 %s, 16, %s'%(v(24+c),v(24+c)))
    for c in range(4): I('v_add_f32 %s, %s, %s'%(v(24+c),v(24+c),v(28+c)))
    I('v_cvt_pk_bf16_f32 v24, v24, v25'); I('v_cvt_pk_bf16_f32 v25, v26, v27')
    I('s_lshl_b32 %s, %s, 10'%(s(sC1),s(sCB))); I('s_lshl_b32 %s, %s, 3'%(s(sC2),s(sCC))); I('s_add_u32 %s, %s, %s'%(s(sC1),s(sC1),s(sC2)))
    I('v_mov_b32 v12, 0')
    I('s_mov_b64 exec, 1')
    I('buffer_store_dwordx2 v[24:25], v12, %s, %s offen'%(s(S_OUT,4),s(sC1)))
    I('s_mov_b64 exec, -1')
    STAMP()
    I('s_cmp_eq_u32 s2, 0'); I('s_cbranch_scc0 L_fin')
    I('s_mov_b32 %s, %d'%(s(sML),W_ML+2048))
    a.label('L_poll2')
    I('s_add_u32 %s, %s, 1'%(s(sCNT),s(sCNT))); I('s_cmp_gt_u32 %s, 400000'%s(sCNT)); I('s_cbranch_scc1 L_fin')
    I('buffer_load_dwordx4 %s, v11, %s, %s offen sc1'%(v(P,4),s(S_WS,4),s(sML)))
    I('buffer_load_dwordx4 %s, v11, %s, %s offen offset:1024 sc1'%(v(P+4,4),s(S_WS,4),s(sML)))
    I('s_waitcnt vmcnt(0)')
    I('v_xor_b32 v16, %s, %s'%(s(sTAG),v(P+1)))
    for k in (3,5,7): I('v_bitop3_b32 v16, %s, %s, v16 bitop3:0xbe'%(v(P+k),s(sTAG)))
    I('v_cmp_ne_u32 vcc, 0, v16')
    I('s_nop 4')
    I('s_cbranch_vccnz L_poll2')
    I('v_mov_b32 v16, %s'%s(sTAG))
    I('s_mov_b64 exec, 1')
    I('buffer_store_dword v16, v12, %s, 0 offen sc1'%s(S_WS,4))
    I('s_mov_b64 exec, -1')
    a.label('L_fin')
    if stamp:
        I('s_memrealtime %s'%s(sST+2*nst[0],2)); nst[0]+=1
        I('s_getreg_b32 %s, hwreg(HW_REG_XCC_ID)'%s(sT1))
        I('s_getreg_b32 %s, hwreg(HW_REG_HW_ID)'%s(sT2))
        I('s_waitcnt lgkmcnt(0)')
        I('s_lshl_b32 %s, s2, 3'%s(sT0)); I('s_add_u32 %s, %s, %s'%(s(sT0),s(sT0),s(sW))); I('s_lshl_b32 %s, %s, 7'%(s(sT0),s(sT0)))
        I('s_add_u32 %s, %s, %d'%(s(sT0),s(sT0),W_ST))
        I('v_mov_b32 v12, 0'); I('s_mov_b64 exec, 1')
        for k in range(nst[0]):
            I('v_mov_b32 v16, %s'%s(sST+2*k))
            I('buffer_store_dword v16, v12, %s, %s offen offset:%d'%(s(S_WS,4),s(sT0),4*k))
        I('v_mov_b32 v16, %s'%s(sT1)); I('buffer_store_dword v16, v12, %s, %s offen offset:120'%(s(S_WS,4),s(sT0)))
        I('v_mov_b32 v16, %s'%s(sT2)); I('buffer_store_dword v16, v12, %s, %s offen offset:124'%(s(S_WS,4),s(sT0)))
    a.label('L_end')
    I('s_endpgm')
    nv=a.maxv+1; ns=max(a.maxs+1,16)
    acc=(nv+3)//4*4
    out=HDR+'; @launch grid=(256,1,1) block=(512,1,1) lds=%d\n'%LDS_BYTES
    out+='.amdgcn_target "amdgcn-amd-amdhsa--gfx950"\n.text\n.globl %s_kernel\n.p2align 8\n.type %s_kernel,@function\n%s_kernel:\n'%(NAME,NAME,NAME)
    out+=a.text()
    out+='''.section .rodata,"a"
.p2align 6
.amdhsa_kernel %s_kernel
  .amdhsa_next_free_vgpr %d
  .amdhsa_next_free_sgpr %d
  .amdhsa_accum_offset %d
  .amdhsa_group_segment_fixed_size 0
  .amdhsa_kernarg_size 104
  .amdhsa_user_sgpr_count 2
  .amdhsa_user_sgpr_kernarg_segment_ptr 1
  .amdhsa_system_sgpr_workgroup_id_x 1
.end_amdhsa_kernel
'''%(NAME,nv,ns,acc)
    info=dict(W_ST=W_ST,nst=nst[0],nv=nv,ns=ns,nops=a.nops)
    return out,info

if __name__=='__main__':
    import argparse
    ap=argparse.ArgumentParser(); ap.add_argument('-o',required=True); ap.add_argument('--stamp',action='store_true')
    ap.add_argument('--no-nt-kv',action='store_true'); ap.add_argument('--nt-w',action='store_true')
    ar=ap.parse_args()
    t,info=gen(stamp=ar.stamp,nt_kv=not ar.no_nt_kv,nt_w=ar.nt_w)
    open(ar.o,'w').write(t); print(info)
```

```python
import sys, subprocess, re, os
from asmlib import Asm

NAME='gated_mix__sliding_block_cached__glu_gated_bilinear__decode'
HDR=open('cdna_kernels/%s.s.ref'%NAME).read().split('; Override launch')[0]
CL='bin/'

def body(stamp, o, npads):
    a=Asm(); I=a.I
    NT=' nt' if o['nt'] else ''
    S_X,S_K,S_V,S_WQ,S_WO,S_WD,S_GW,S_OUT,S_WS = 8,12,16,20,24,28,32,36,40
    S_WG,S_WU = 44,46
    sTAG,sW,sH,sB,sJ,sT0,sT1,sT2,sOFF,sCNT,sC1,sC2,sFB,sRH,sCQ,sGRP,sT3,sHASF,sPB = 48,49,50,51,52,53,54,55,56,57,58,59,60,61,62,63,4,5,6
    sST=64
    vL=1; vG=2; vJ=3; vM=4
    vQB=32; vK=48; vV=80; vWO=112; vWD=120; vP=124; vMX=132; vH=133; vGT=134
    vX=32; vA=40; vW=52; GX=116
    def v(n,c=1): return 'v%d'%n if c==1 else 'v[%d:%d]'%(n,n+c-1)
    def s(n,c=1): return 's%d'%n if c==1 else 's[%d:%d]'%(n,n+c-1)
    L_Q=0; L_G=256; L_H=512; L_MX=768; L_LW=832; L_OP=1024; L_AP=5120; LDS_BYTES=13312
    W_XQ=4096; W_XF=W_XQ+256*2048; W_XO=W_XF+22*8*2048; W_XM=W_XO+256*1024; W_XA=W_XM+256*128; W_END0=W_XA+512*1024
    BOFF=W_XA-4096 if o['dual'] else 0
    BOFF=(W_END0-W_XQ) if o['dual'] else 0
    W_END0=W_END0+(W_XA-W_XQ if o['dual'] else 0)
    W_ST=4194304
    assert W_END0<=W_ST
    W_END=W_ST+256*16*128 if stamp else W_END0
    def STAMP(k):
        if stamp: I('s_memrealtime %s'%s(sST+2*k,2))
    def DPP(op,d,x,y,ctrl): I('%s_dpp %s, %s, %s %s row_mask:0xf bank_mask:0xf'%(op,v(d),v(x),v(y),ctrl))
    def DPPM(d,x,ctrl): I('v_mov_b32_dpp %s, %s %s row_mask:0xf bank_mask:0xf'%(v(d),v(x),ctrl))
    def allreduce(regs, op='v_add_f32', tmp=21, first=0):
        for ctrl in ('quad_perm:[1,0,3,2]','quad_perm:[2,3,0,1]','row_half_mirror','row_mirror')[first:]:
            for r in regs: DPP(op,r,r,r,ctrl)
        for sw in ('v_permlane16_swap_b32','v_permlane32_swap_b32'):
            for k,r in enumerate(regs): I('v_mov_b32 %s, %s'%(v(tmp+k),v(r)))
            for k,r in enumerate(regs): I('%s %s, %s'%(sw,v(r),v(tmp+k)))
            for k,r in enumerate(regs): I('%s %s, %s, %s'%(op,v(r),v(r),v(tmp+k)))
    def masks():
        I('v_and_b32 v16, 1, v0'); I('v_lshlrev_b32 v16, 4, v16'); I('v_mov_b32 v17, 0xffff'); I('v_lshlrev_b32 v16, v16, v17')
        I('v_bfe_u32 v17, v0, 1, 2')
        for r in range(4):
            I('v_cmp_eq_u32 %s, %d, v17'%(s(84+2*r,2),r))
        for r in range(4):
            I('v_cndmask_b32 %s, 0, v16, %s'%(v(vM+r),s(84+2*r,2)))
    def srd_consts(lst):
        for (r,n) in lst:
            I('s_mov_b32 %s, 0x%x'%(s(r+2),n)); I('s_mov_b32 %s, 0x20000'%s(r+3))

    I('s_cmp_ge_u32 s2, 256'); I('s_cbranch_scc1 L_end')
    STAMP(0)
    if stamp: I('s_memtime s[96:97]')
    for (r,off) in ((S_WQ,24),(S_X,0),(S_WG,48),(S_WU,56),(S_K,8),(S_V,16),(S_WS,96),(S_GW,72),(S_WD,64),(S_WO,32),(S_OUT,80)):
        I('s_load_dwordx2 %s, s[0:1], %d'%(s(r,2),off))
    I('v_lshrrev_b32 v8, 6, v0')
    I('v_and_b32 %s, 63, v0'%v(vL))
    I('v_readfirstlane_b32 %s, v8'%s(sW))
    I('v_bfe_u32 %s, v0, 4, 2'%v(vG))
    I('v_and_b32 %s, 15, v0'%v(vJ))
    I('s_and_b32 %s, s2, 7'%s(sT0)); I('s_lshr_b32 %s, s2, 6'%s(sT1))
    I('s_lshl2_add_u32 %s, %s, %s'%(s(sH),s(sT0),s(sT1)))
    I('s_lshl3_add_u32 %s, %s, %s'%(s(sFB),s(sT1),s(sT0)))
    I('s_bfe_u32 %s, s2, 0x30003'%s(sJ))
    I('s_cmp_lt_u32 %s, 2'%s(sW)); I('s_cbranch_scc0 L_str')
    if o['prio']: I('s_setprio 3')
    if o.get('noaux'):
        srd_consts(((S_WS,W_END),)); I('s_waitcnt lgkmcnt(0)'); I('s_branch L_adone')
    srd_consts(((S_X,2048),(S_WQ,1<<22),(S_GW,1024)))
    I('s_lshl_b32 %s, %s, 6'%(s(sT0),s(sJ))); I('v_lshl_add_u32 v9, %s, 4, %s'%(v(vG),s(sT0)))
    I('v_lshlrev_b32 v11, 7, v0'); I('v_and_b32 v11, 1024, v11'); I('v_lshl_add_u32 v11, v9, 1, v11')
    I('s_cmp_eq_u32 %s, 1'%s(sW)); I('s_cbranch_scc1 L_auxf')
    I('s_lshl_b32 %s, %s, 8'%(s(sOFF),s(sH)))
    I('v_lshlrev_b32 v10, 13, v9'); I('v_lshl_add_u32 v10, %s, 4, v10'%v(vJ))
    I('s_waitcnt lgkmcnt(0)')
    STAMP(1)
    a.VM('x0','buffer_load_dwordx4 %s, v11, %s, 0 offen'%(v(vX,4),s(S_X,4)))
    a.VM('x1','buffer_load_dwordx4 %s, v11, %s, 0 offen offset:16'%(v(vX+4,4),s(S_X,4)))
    for t in range(16):
        a.VM('w%d'%t,'buffer_load_dwordx4 %s, v10, %s, %s offen%s'%(v(vW+4*t,4),s(S_WQ,4),s(sOFF),NT))
        if t<15: I('s_addk_i32 %s, 0x2000'%s(sOFF))
    I('s_branch L_auxc')
    a.label('L_auxf')
    I('v_lshlrev_b32 v10, 4, %s'%v(vL))
    I('s_cmp_eq_u32 %s, 21'%s(sFB)); I('s_cselect_b32 %s, 3, 7'%s(sT1))
    I('v_mul_u32_u24 v20, 2752, v9')
    I('v_and_b32 v21, %s, v0'%s(sT1)); I('v_lshl_add_u32 v20, v21, 4, v20')
    I('s_lshl_b32 %s, %s, 7'%(s(sT0),s(sFB))); I('s_addk_i32 %s, 2752'%s(sT0)); I('v_add_u32 v20, %s, v20'%s(sT0))
    I('v_cmp_gt_u32 vcc, 8, %s'%v(vJ))
    I('s_cmp_lt_u32 %s, 22'%s(sFB))
    I('s_waitcnt lgkmcnt(0)')
    STAMP(1)
    I('buffer_load_dwordx4 %s, v10, %s, 0 offen'%(v(GX,4),s(S_X,4)))
    I('buffer_load_dwordx4 %s, v10, %s, 0 offen offset:1024'%(v(GX+4,4),s(S_X,4)))
    I('buffer_load_dwordx4 %s, v10, %s, 0 offen'%(v(GX+8,4),s(S_GW,4)))
    I('s_cbranch_scc0 L_auxc')
    I('buffer_load_dwordx4 %s, v11, %s, 0 offen'%(v(vX,4),s(S_X,4)))
    I('buffer_load_dwordx4 %s, v11, %s, 0 offen offset:16'%(v(vX+4,4),s(S_X,4)))
    I('v_mov_b32 v18, %s'%s(S_WU)); I('v_mov_b32 v19, %s'%s(S_WU+1)); I('v_mov_b32 v16, %s'%s(S_WG)); I('v_mov_b32 v17, %s'%s(S_WG+1))
    I('v_cndmask_b32 v18, v18, v16, vcc'); I('v_cndmask_b32 v19, v19, v17, vcc')
    I('v_mov_b32 v21, 0'); I('s_mov_b32 %s, %d'%(s(84),3*2752)); I('s_mov_b32 %s, 0'%s(85))
    I('v_lshl_add_u64 v[18:19], v[18:19], 0, v[20:21]')
    for t in range(16):
        k=t%3
        if t and k==0: I('v_lshl_add_u64 v[18:19], v[18:19], 0, s[84:85]')
        I('global_load_dwordx4 %s, v[18:19], off offset:%d%s'%(v(vW+4*t,4),(k-1)*2752,NT))
    I('s_branch L_auxc')
    a.label('L_str')
    vm_aux=a.vm; a.vm=[]
    I('s_sub_u32 %s, %s, 2'%(s(sW),s(sW)))
    srd_consts(((S_K,1<<26),(S_V,1<<26)))
    I('s_lshr_b32 %s, %s, 2'%(s(sB),s(sJ)))
    I('s_lshl_b32 %s, %s, 5'%(s(sT0),s(sB))); I('s_add_u32 %s, %s, %s'%(s(sT0),s(sT0),s(sH))); I('s_lshl_b32 %s, %s, 7'%(s(sT0),s(sT0)))
    I('s_and_b32 %s, %s, 3'%(s(sT1),s(sJ))); I('s_lshl3_add_u32 %s, %s, %s'%(s(sT1),s(sT1),s(sW))); I('s_add_u32 %s, %s, %s'%(s(sT0),s(sT0),s(sT1)))
    I('s_addk_i32 %s, 96'%s(sT0)); I('s_lshl_b32 %s, %s, 13'%(s(sT2),s(sT0))); I('s_add_u32 %s, %s, 4096'%(s(sT3),s(sT2)))
    I('v_lshlrev_b32 v12, 6, v0'); I('v_and_b32 v12, 0x300, v12')
    I('v_and_b32 v13, 3, v0'); I('v_lshl_add_u32 v13, %s, 2, v13'%v(vG))
    I('v_lshlrev_b32 v11, 4, v13')
    I('v_add_u32 v12, v12, v11')
    I('v_lshlrev_b32 v13, 4, %s'%v(vL))
    def kv(idx):
        n=idx&7
        if idx<8: a.VM('k%d'%n,'buffer_load_dwordx4 %s, v12, %s, %s offen offset:%d%s'%(v(vK+4*n,4),s(S_K,4),s(sT3 if n>=4 else sT2),(n&3)*1024,NT))
        else: a.VM('v%d'%n,'buffer_load_dwordx4 %s, v13, %s, %s offen offset:%d%s'%(v(vV+4*n,4),s(S_V,4),s(sT3 if n>=4 else sT2),(n&3)*1024,NT))
    I('s_waitcnt lgkmcnt(0)')
    if o['b0']: I('s_barrier')
    STAMP(1)
    for idx in range(o['first']): kv(idx)
    if npads:
        I('s_mov_b64 exec, 0')
        for p in range(npads):
            I('s_cmp_eq_u32 %s, %d'%(s(sW),p%8)); I('s_cbranch_scc1 L_pad%d'%p) if p<8 else None
        a.label('L_back')
        I('s_mov_b64 exec, -1')
    I('s_branch L_str2')
    vm_str=a.vm
    a.label('L_auxc')
    a.vm=vm_aux
    if o['b0']: I('s_barrier')
    I('s_load_dword %s, %s, 0'%(s(sTAG),s(S_WS,2)))
    STAMP(2)
    srd_consts(((S_WS,W_END),))
    I('s_and_b32 %s, %s, 1'%(s(sRH),s(sJ)))
    I('s_lshl1_add_u32 %s, %s, %s'%(s(sHASF),s(sFB),s(sRH)))
    I('s_mov_b32 %s, 0x3fb8aa3b'%s(sC2))
    I('v_lshlrev_b32 v8, 4, %s'%v(vL)); I('v_and_b32 v9, 512, v8'); I('v_add_u32 v9, v9, v8')
    I('s_cmp_eq_u32 %s, 1'%s(sW)); I('s_cbranch_scc1 L_f1')
    I('s_lshl_b32 %s, %s, 14'%(s(sPB),s(sH))); I('s_add_u32 %s, %s, %d'%(s(sPB),s(sPB),W_XQ))
    I('s_lshr_b32 %s, %s, 2'%(s(sT0),s(sJ)))
    I('s_branch L_f2')
    a.label('L_f1')
    I('s_cmp_lt_u32 %s, 22'%s(sFB)); I('s_cbranch_scc1 L_f1b')
    I('s_waitcnt vmcnt(0)'); I('s_branch L_gate')
    a.label('L_f1b')
    I('v_bfe_u32 v8, v0, 2, 1'); I('v_lshlrev_b32 v8, 9, v8')
    I('v_bfe_u32 v10, v0, 3, 1'); I('v_lshl_add_u32 v8, v10, 8, v8')
    I('v_lshl_add_u32 v8, %s, 6, v8'%v(vG))
    I('v_and_b32 v10, 3, v0'); I('v_lshl_add_u32 v8, v10, 4, v8')
    I('s_lshl_b32 %s, %s, 14'%(s(sPB),s(sFB))); I('s_add_u32 %s, %s, %d'%(s(sPB),s(sPB),W_XF))
    I('s_mov_b32 %s, %s'%(s(sT0),s(sRH)))
    a.label('L_f2')
    I('s_lshl_b32 %s, %s, 11'%(s(sOFF),s(sJ))); I('s_add_u32 %s, %s, %s'%(s(sOFF),s(sOFF),s(sPB)))
    I('s_lshl_b32 %s, %s, 9'%(s(sT0),s(sT0))); I('s_add_u32 %s, %s, %s'%(s(sPB),s(sPB),s(sT0)))
    masks()
    I('v_mov_b32 v18, 0x0c0c0c0c'); I('s_mov_b32 %s, 0x01000100'%s(sT0)); I('s_mov_b32 %s, 0x03020302'%s(sT1))
    for r in range(4):
        I('v_bfi_b32 %s, %s, %s, v18'%(v(20+r),v(vM+r),s(sT0)))
        I('v_bfi_b32 %s, %s, %s, v18'%(v(24+r),v(vM+r),s(sT1)))
    a.wait_vm('x1')
    for t in range(16):
        ar=vA+4*(t%3)
        for r in range(4):
            I('v_perm_b32 %s, %s, %s, %s'%(v(ar+r),v(vX+t//2),v(vX+t//2),v((24 if t&1 else 20)+r)))
        if t%2==0: a.wait_vm('w%d'%(t+1))
        I('v_mfma_f32_16x16x32_bf16 v[12:15], %s, %s, %s'%(v(ar,4),v(vW+4*t,4),'0' if t==0 else 'v[12:15]'))
    STAMP(3)
    I('s_waitcnt lgkmcnt(0)')
    I('s_add_u32 %s, %s, 0x9e3779b9'%(s(sTAG),s(sTAG)))
    I('v_mov_b32 v17, %s'%s(sTAG)); I('v_mov_b32 v19, %s'%s(sTAG)); I('v_mov_b32 v21, %s'%s(sTAG)); I('v_mov_b32 v23, %s'%s(sTAG))
    I('s_mov_b32 %s, 0'%s(sCNT))
    I('v_mov_b32 v16, v12'); I('v_mov_b32 v18, v13'); I('v_mov_b32 v20, v14'); I('v_mov_b32 v22, v15')
    if o.get('nopub1'): I('s_branch L_adone')
    if o['dual']:
        I('buffer_store_dwordx4 v[16:19], v8, %s, %s offen'%(s(S_WS,4),s(sOFF)))
        I('buffer_store_dwordx4 v[20:23], v8, %s, %s offen offset:1024'%(s(S_WS,4),s(sOFF)))
        I('s_add_u32 %s, %s, %d'%(s(sOFF),s(sOFF),BOFF))
    I('buffer_store_dwordx4 v[16:19], v8, %s, %s offen sc1'%(s(S_WS,4),s(sOFF)))
    I('buffer_store_dwordx4 v[20:23], v8, %s, %s offen offset:1024 sc1'%(s(S_WS,4),s(sOFF)))
    if o.get('nopoll1'): I('s_branch L_adone')
    I('s_cmp_eq_u32 %s, 0'%s(sW)); I('s_cbranch_scc1 L_pdel')
    a.label('L_gate')
    I('s_waitcnt vmcnt(%d)'%(4 if o['dual'] else 2))
    for bb in range(2):
        for k in range(4):
            I('v_lshlrev_b32 v12, 16, %s'%v(GX+4*bb+k)); I('v_and_b32 v13, 0xffff0000, %s'%v(GX+4*bb+k))
            I('v_lshlrev_b32 v14, 16, %s'%v(GX+8+k)); I('v_and_b32 v15, 0xffff0000, %s'%v(GX+8+k))
            I('v_pk_mul_f32 v[12:13], v[12:13], v[14:15]')
            I('v_cvt_pk_bf16_f32 v12, v12, v13')
            I('v_and_b32 v13, 0xffff0000, v12'); I('v_lshlrev_b32 v12, 16, v12')
            if k==0: I('v_add_f32 %s, v12, v13'%v(28+bb))
            else: I('v_add_f32 v12, v12, v13'); I('v_add_f32 %s, %s, v12'%(v(28+bb),v(28+bb)))
    I('v_permlane32_swap_b32 v28, v29'); I('v_add_f32 v28, v28, v29')
    for ctrl in ('quad_perm:[1,0,3,2]','quad_perm:[2,3,0,1]','row_half_mirror','row_mirror'): DPP('v_add_f32',28,28,28,ctrl)
    I('v_mov_b32 v29, v28'); I('v_permlane16_swap_b32 v28, v29'); I('v_add_f32 v28, v28, v29')
    I('v_cvt_pk_bf16_f32 v28, v28, v28'); I('v_lshlrev_b32 v28, 16, v28')
    I('v_mul_f32 v28, %s, v28'%s(sC2)); I('v_exp_f32 v28, -v28'); I('v_add_f32 v28, 1.0, v28'); I('v_rcp_f32 v28, v28')
    I('v_cvt_pk_bf16_f32 v28, v28, v28'); I('v_lshlrev_b32 v28, 16, v28')
    I('v_sub_f32 v29, 1.0, v28'); I('v_cvt_pk_bf16_f32 v29, v29, v29'); I('v_lshlrev_b32 v29, 16, v29')
    I('v_lshrrev_b32 v30, 5, %s'%v(vL)); I('v_lshlrev_b32 v31, 2, v30')
    I('ds_write_b32 v31, v28 offset:%d'%L_G)
    I('v_mov_b32 v28, v29'); I('v_and_b32 v31, 8, v0'); I('v_cmp_eq_u32 vcc, 0, v31'); I('v_permlane32_swap_b32 v28, v29')
    I('v_cndmask_b32 v29, v29, v28, vcc')
    I('s_cmp_lt_u32 %s, 43'%s(sHASF)); I('s_cbranch_scc0 L_adone')
    I('s_branch L_p1')
    a.label('L_pdel')
    if o['pdelay']: I('s_sleep %d'%o['pdelay'])
    a.label('L_p1')
    I('s_add_u32 %s, %s, 1'%(s(sCNT),s(sCNT))); I('s_cmp_gt_u32 %s, 200000'%s(sCNT)); I('s_cbranch_scc1 L_fin')
    I('s_and_b32 %s, %s, %d'%(s(sT0),s(sCNT),o['bmask'])); I('s_cselect_b32 %s, 0, %d'%(s(sT0),BOFF)); I('s_add_u32 %s, %s, %s'%(s(sT0),s(sT0),s(sPB)))
    I('s_add_u32 %s, %s, 4096'%(s(sT1),s(sT0))); I('s_add_u32 %s, %s, 8192'%(s(sT2),s(sT0))); I('s_add_u32 %s, %s, 12288'%(s(sT3),s(sT0)))
    for jj in range(8):
        I('buffer_load_dwordx4 %s, v9, %s, %s offen offset:%d sc1'%(v(vW+4*jj,4),s(S_WS,4),s([sT0,sT1,sT2,sT3][jj>>1]),(jj&1)*2048))
    I('s_waitcnt vmcnt(0)')
    I('v_xor_b32 v16, %s, %s'%(s(sTAG),v(vW+1))); I('v_xor_b32 v17, %s, %s'%(s(sTAG),v(vW+3)))
    for k in range(1,8):
        I('v_bitop3_b32 v16, %s, %s, v16 bitop3:0xbe'%(v(vW+4*k+1),s(sTAG)))
        I('v_bitop3_b32 v17, %s, %s, v17 bitop3:0xbe'%(v(vW+4*k+3),s(sTAG)))
    I('v_or_b32 v16, v16, v17'); I('v_cmp_ne_u32 vcc, 0, v16'); I('s_nop 4'); I('s_cbranch_vccnz L_p1')
    for (x,y) in ((0,4),(1,5),(2,6),(3,7),(0,2),(1,3)):
        I('v_add_f32 %s, %s, %s'%(v(vW+4*x),v(vW+4*x),v(vW+4*y))); I('v_add_f32 %s, %s, %s'%(v(vW+4*x+2),v(vW+4*x+2),v(vW+4*y+2)))
    I('v_add_f32 v16, %s, %s'%(v(vW),v(vW+4))); I('v_add_f32 v17, %s, %s'%(v(vW+2),v(vW+6)))
    I('v_cvt_pk_bf16_f32 v16, v16, v17')
    I('s_cmp_eq_u32 %s, 0'%s(sW)); I('s_cbranch_scc0 L_hh')
    I('v_lshlrev_b32 v10, 4, %s'%v(vJ)); I('v_bfe_u32 v11, v0, 4, 1'); I('v_lshl_add_u32 v10, v11, 3, v10')
    I('v_bfe_u32 v11, v0, 5, 1'); I('v_lshl_add_u32 v10, v11, 2, v10')
    I('ds_write_b32 v10, v16 offset:%d'%L_Q)
    I('s_branch L_adone')
    a.label('L_hh')
    I('v_mov_b32 v17, v16'); I('v_permlane16_swap_b32 v16, v17')
    I('v_lshlrev_b32 v18, 16, v16'); I('v_lshlrev_b32 v19, 16, v17'); I('v_and_b32 v16, 0xffff0000, v16'); I('v_and_b32 v17, 0xffff0000, v17')
    I('v_mul_f32 v18, v18, v19'); I('v_mul_f32 v16, v16, v17')
    I('v_cvt_pk_bf16_f32 v16, v18, v16')
    I('v_lshlrev_b32 v18, 16, v16'); I('v_and_b32 v16, 0xffff0000, v16')
    I('v_mul_f32 v18, v18, v29'); I('v_mul_f32 v16, v16, v29')
    I('v_cvt_pk_bf16_f32 v18, v18, v18'); I('v_cvt_pk_bf16_f32 v19, v16, v16')
    I('v_lshlrev_b32 v30, 3, v30'); I('v_and_b32 v31, 3, v0'); I('v_lshl_add_u32 v30, v31, 5, v30')
    I('v_and_b32 v31, 4, v0'); I('v_lshl_add_u32 v30, v31, 2, v30'); I('v_and_b32 v31, 8, v0'); I('v_lshl_add_u32 v30, v31, 4, v30')
    I('ds_write_b64 v30, v[18:19] offset:%d'%L_H)
    a.label('L_adone')
    STAMP(4)
    I('s_waitcnt lgkmcnt(0)'); I('s_barrier')
    I('s_branch L_fin')

    a.label('L_str2')
    a.vm=vm_str
    D=o['D']
    for idx in range(o['first'],D): kv(idx)
    I('s_load_dword %s, %s, 0'%(s(sTAG),s(S_WS,2)))
    srd_consts(((S_WO,1<<22),(S_WD,1376*1024),(S_OUT,2048),(S_WS,W_END)))
    I('s_and_b32 %s, %s, 1'%(s(sRH),s(sJ))); I('s_lshr_b32 %s, %s, 1'%(s(sCQ),s(sJ)))
    I('s_lshl_b32 %s, %s, 3'%(s(sGRP),s(sH)))
    I('s_lshl1_add_u32 %s, %s, %s'%(s(sHASF),s(sFB),s(sRH)))
    masks()
    I('s_lshl_b32 %s, %s, 7'%(s(sT0),s(sH))); I('s_lshl_b32 %s, %s, 6'%(s(sT1),s(sRH))); I('s_add_u32 %s, %s, %s'%(s(sT0),s(sT0),s(sT1)))
    I('s_lshl3_add_u32 %s, %s, %s'%(s(sT0),s(sW),s(sT0)))
    I('s_lshl_b32 %s, %s, 8'%(s(sT1),s(sCQ)))
    I('v_lshl_add_u32 v10, %s, 4, %s'%(v(vJ),s(sT1)))
    I('v_lshl_add_u32 v9, %s, 1, %s'%(v(vG),s(sT0))); I('v_lshl_add_u32 v9, v9, 10, v10')
    I('s_lshl_b32 %s, %s, 5'%(s(sT0),s(sHASF))); I('s_lshl_b32 %s, %s, 2'%(s(sT1),s(sW))); I('s_add_u32 %s, %s, %s'%(s(sT0),s(sT0),s(sT1)))
    I('v_add_u32 v8, %s, %s'%(s(sT0),v(vG))); I('v_lshl_add_u32 v8, v8, 10, v10')
    I('v_and_b32 v10, 1, %s'%v(vG)); I('v_lshlrev_b32 v10, 4, v10'); I('v_lshl_add_u32 v10, %s, 5, v10'%v(vJ))
    I('v_bfe_u32 v14, v0, 3, 1'); I('v_and_b32 v15, 3, v0'); I('v_lshl_add_u32 v15, v14, 2, v15')
    I('v_add_u32 v16, %s, %s'%(s(sT1),v(vG)))
    I('v_lshlrev_b32 v17, 2, v16'); I('v_lshl_add_u32 %s, v14, 7, v17'%v(vH))
    I('v_lshlrev_b32 %s, 2, v14'%v(vGT))
    I('v_lshlrev_b32 v16, 4, v16'); I('v_lshl_add_u32 v14, v15, 10, v16'); I('v_lshlrev_b32 v15, 7, v15')
    I('v_lshrrev_b32 v16, 2, %s'%v(vJ))
    for u in range(4): I('v_cmp_eq_u32 %s, %d, v16'%(s(84+2*u,2),u))
    I('s_mov_b32 %s, 0x3db504f3'%s(sC1)); I('s_mov_b32 %s, 0x3fb8aa3b'%s(sC2))
    for idx in range(max(D,o['first']),16):
        if idx<8+D: I('s_waitcnt vmcnt(%d)'%(D-1))
        kv(idx)
    STAMP(2)
    I('s_waitcnt lgkmcnt(0)')
    I('s_add_u32 %s, %s, 0x9e3779b9'%(s(sTAG),s(sTAG)))
    I('s_barrier')
    STAMP(3)
    I('ds_read_b128 v[24:27], v11 offset:%d'%L_Q)
    I('ds_read_b32 %s, %s offset:%d'%(v(vH),v(vH),L_H))
    I('ds_read_b32 %s, %s offset:%d'%(v(vGT),v(vGT),L_G))
    I('s_lshl_b32 %s, %s, 2'%(s(sT0),s(sW))); I('v_mov_b32 v11, %s'%s(sT0)); I('v_mov_b32 v12, 0')
    I('s_waitcnt lgkmcnt(2)')
    for u in range(4):
        for k in range(4): I('v_cndmask_b32 %s, 0, %s, %s'%(v(vQB+4*u+k),v(24+k),s(84+2*u,2)))
    a.wait_vm('k7')
    for u in range(4):
        for G in range(2):
            n=4*G+u; d=16+4*G
            I('v_mfma_f32_16x16x32_bf16 %s, %s, %s, %s'%(v(d,4),v(vK+4*n,4),v(vQB+4*u,4),'0' if u==0 else v(d,4)))
    for G in range(2): DPPM(24+G,16+4*G,'quad_perm:[0,0,0,0]')
    for r in range(1,4):
        for G in range(2): DPP('v_add_f32',24+G,16+4*G+r,24+G,'quad_perm:[%d,%d,%d,%d]'%(r,r,r,r))
    I('v_cvt_pk_bf16_f32 v24, v24, v25')
    I('v_and_b32 v25, 0xffff0000, v24'); I('v_lshlrev_b32 v24, 16, v24')
    I('v_mul_f32 v24, %s, v24'%s(sC1)); I('v_mul_f32 v25, %s, v25'%s(sC1))
    I('v_cvt_pk_bf16_f32 v24, v24, v25')
    I('v_and_b32 v25, 0xffff0000, v24'); I('v_lshlrev_b32 v24, 16, v24')
    I('v_max_f32 v26, v24, v25')
    DPP('v_max_f32',26,26,26,'row_ror:4'); DPP('v_max_f32',26,26,26,'row_ror:8')
    I('v_mov_b32 v27, v26'); I('v_permlane16_swap_b32 v26, v27'); I('v_max_f32 v26, v26, v27')
    I('v_mov_b32 v27, v26'); I('v_permlane32_swap_b32 v26, v27'); I('v_max_f32 v26, v26, v27')
    I('s_mov_b64 exec, 1')
    I('ds_write_b32 v11, v26 offset:%d'%L_MX)
    I('s_mov_b64 exec, -1')
    I('s_waitcnt lgkmcnt(0)'); I('s_barrier')
    I('ds_read_b128 v[16:19], v12 offset:%d'%L_MX); I('ds_read_b128 v[20:23], v12 offset:%d'%(L_MX+16))
    I('s_waitcnt lgkmcnt(0)')
    I('v_max3_f32 v16, v16, v17, v18'); I('v_max3_f32 v20, v20, v21, v22'); I('v_max3_f32 v16, v16, v19, v23'); I('v_max_f32 %s, v16, v20'%v(vMX))
    I('v_sub_f32 v24, v24, %s'%v(vMX)); I('v_sub_f32 v25, v25, %s'%v(vMX))
    I('v_mul_f32 v24, %s, v24'%s(sC2)); I('v_mul_f32 v25, %s, v25'%s(sC2))
    I('v_exp_f32 v24, v24'); I('v_exp_f32 v25, v25')
    I('v_cvt_pk_bf16_f32 v28, v24, v24'); I('v_cvt_pk_bf16_f32 v29, v25, v25')
    I('v_add_f32 v26, v24, v25')
    for n in range(8):
        for r in range(4):
            DPP('v_and_b32',vK+4*n+r,28+(n>>2),vM+r,'row_newbcast:%d'%(4*(n&3)))
    for t in range(2):
        a.VM('wo%d'%t,'buffer_load_dwordx4 %s, v9, %s, 0 offen offset:%d%s'%(v(vWO+4*t,4),s(S_WO,4),t*1024,NT))
    I('s_cmp_lt_u32 %s, 43'%s(sHASF)); I('s_cbranch_scc0 L_nowd')
    a.cond='wd'
    a.VM('wd','buffer_load_dwordx4 %s, v8, %s, 0 offen%s'%(v(vWD,4),s(S_WD,4),NT))
    a.cond=None
    a.label('L_nowd')
    DPP('v_add_f32',26,26,26,'row_ror:4'); DPP('v_add_f32',26,26,26,'row_ror:8')
    I('v_mov_b32 v27, v26'); I('v_permlane16_swap_b32 v26, v27'); I('v_add_f32 v26, v26, v27')
    I('v_mov_b32 v27, v26'); I('v_permlane32_swap_b32 v26, v27'); I('v_add_f32 v26, v26, v27')
    I('s_mov_b64 exec, 1')
    I('ds_write_b32 v11, v26 offset:%d'%L_LW)
    I('s_mov_b64 exec, -1')
    for r in range(4): I('v_and_b32 %s, %s, %s'%(v(vQB+r),v(vH),v(vM+r)))
    I('s_lshl_b32 %s, %s, 9'%(s(sT0),s(sW))); I('v_add_u32 v11, %s, v10'%s(sT0))
    I('s_lshl_b32 %s, %s, 10'%(s(sT0),s(sGRP))); I('s_add_u32 %s, %s, %d'%(s(sT0),s(sT0),W_XO))
    I('s_lshl_b32 %s, %s, 9'%(s(sT1),s(sRH))); I('s_add_u32 %s, %s, %s'%(s(sT1),s(sT1),s(sT0)))
    I('s_lshl_b32 %s, %s, 7'%(s(sT2),s(sGRP))); I('s_add_u32 %s, %s, %d'%(s(sT2),s(sT2),W_XM))
    I('v_lshlrev_b32 v13, 3, %s'%v(vL))
    I('v_lshrrev_b32 v30, 1, %s'%v(vG)); I('v_lshl_add_u32 v30, v30, 9, v10'); I('s_lshl_b32 %s, %s, 10'%(s(sT3),s(sW))); I('v_add_u32 v30, %s, v30'%s(sT3))
    I('s_lshl1_add_u32 %s, %s, %s'%(s(sOFF),s(sCQ),s(sW))); I('s_lshl_b32 %s, %s, 5'%(s(sOFF),s(sOFF))); I('s_add_u32 %s, %s, %s'%(s(sOFF),s(sOFF),s(sH)))
    I('s_lshl1_add_u32 %s, %s, %s'%(s(sOFF),s(sOFF),s(sRH))); I('s_lshl_b32 %s, %s, 10'%(s(sOFF),s(sOFF))); I('s_add_u32 %s, %s, %d'%(s(sOFF),s(sOFF),W_XA))
    I('s_and_b32 %s, s2, 7'%s(sC1)); I('s_bfe_u32 %s, s2, 0x40003'%s(sT3)); I('s_lshl4_add_u32 %s, %s, %s'%(s(sC1),s(sC1),s(sT3)))
    I('s_lshr_b32 %s, s2, 7'%s(sB))
    I('s_lshr_b32 %s, %s, 5'%(s(sPB),s(sC1))); I('s_lshl1_add_u32 %s, %s, %s'%(s(sPB),s(sPB),s(sB))); I('s_lshl_b32 %s, %s, 11'%(s(sPB),s(sPB)))
    I('s_and_b32 %s, %s, 31'%(s(sT3),s(sC1))); I('s_add_u32 %s, %s, %s'%(s(sPB),s(sPB),s(sT3))); I('s_lshl_b32 %s, %s, 5'%(s(sPB),s(sPB)))
    I('s_add_u32 %s, %s, %d'%(s(sPB),s(sPB),W_XA))
    I('s_lshl_b32 %s, %s, 7'%(s(sB),s(sB))); I('s_add_u32 %s, %s, %s'%(s(sC1),s(sC1),s(sB))); I('s_lshl_b32 %s, %s, 3'%(s(sC1),s(sC1)))
    I('v_lshlrev_b32 v31, 4, %s'%v(vL))
    I('v_mov_b32 v21, %s'%s(sTAG)); I('v_mov_b32 v23, %s'%s(sTAG))
    I('s_mov_b32 %s, 0'%s(sCNT))
    if o['warm2']:
        a.VM('wm0','buffer_load_dwordx4 %s, v14, %s, %s offen sc1'%(v(vP,4),s(S_WS,4),s(sT1)))
        a.VM('wm1','buffer_load_dwordx4 %s, v15, %s, %s offen sc1'%(v(vP+4,4),s(S_WS,4),s(sT2)))
    STAMP(4)
    for n in range(8):
        a.wait_vm('v%d'%n)
        I('v_mfma_f32_16x16x32_bf16 v[16:19], %s, %s, %s'%(v(vK+4*n,4),v(vV+4*n,4),'0' if n==0 else 'v[16:19]'))
    STAMP(5)
    I('s_mov_b64 exec, 0xffffffff')
    I('s_cmp_lt_u32 %s, 2'%s(sW))
    I('ds_write_b128 v11, v[16:19] offset:%d'%L_OP)
    I('s_mov_b64 exec, -1')
    I('s_waitcnt lgkmcnt(0)'); I('s_barrier')
    I('s_cbranch_scc0 L_x2w')
    I('s_cmp_eq_u32 %s, 0'%s(sW)); I('s_cbranch_scc0 L_ml')
    R=vV
    for w in range(8): I('ds_read_b64 %s, v13 offset:%d'%(v(R+2*w,2),L_OP+w*512))
    I('s_lshl_b32 %s, %s, 10'%(s(sT3),s(sJ))); I('s_add_u32 %s, %s, %s'%(s(sT3),s(sT3),s(sT0)))
    I('s_waitcnt lgkmcnt(0)')
    def sum8():
        for (x,y) in ((0,8),(2,10),(4,12),(6,14),(0,4),(2,6)):
            I('v_pk_add_f32 %s, %s, %s'%(v(R+x,2),v(R+x,2),v(R+y,2)))
        I('v_add_f32 v20, %s, %s'%(v(R),v(R+2))); I('v_add_f32 v22, %s, %s'%(v(R+1),v(R+3)))
    sum8()
    if o['dual']:
        I('buffer_store_dwordx4 v[20:23], v31, %s, %s offen'%(s(S_WS,4),s(sT3))); I('s_add_u32 %s, %s, %d'%(s(sT3),s(sT3),BOFF))
    I('buffer_store_dwordx4 v[20:23], v31, %s, %s offen sc1'%(s(S_WS,4),s(sT3)))
    I('s_branch L_x2w')
    a.label('L_ml')
    I('ds_read_b128 %s, v12 offset:%d'%(v(R,4),L_LW)); I('ds_read_b128 %s, v12 offset:%d'%(v(R+4,4),L_LW+16))
    I('s_lshl_b32 %s, %s, 7'%(s(sT3),s(sJ))); I('s_add_u32 %s, %s, %s'%(s(sT3),s(sT3),s(sT2)))
    I('v_mov_b32 v20, %s'%v(vMX))
    I('s_waitcnt lgkmcnt(0)')
    I('v_pk_add_f32 %s, %s, %s'%(v(R,2),v(R,2),v(R+4,2))); I('v_pk_add_f32 %s, %s, %s'%(v(R+2,2),v(R+2,2),v(R+6,2)))
    I('v_pk_add_f32 %s, %s, %s'%(v(R,2),v(R,2),v(R+2,2))); I('v_add_f32 v22, %s, %s'%(v(R),v(R+1)))
    I('s_mov_b64 exec, 0xff')
    if o['dual']:
        I('buffer_store_dwordx4 v[20:23], v31, %s, %s offen'%(s(S_WS,4),s(sT3))); I('s_add_u32 %s, %s, %d'%(s(sT3),s(sT3),BOFF))
    I('buffer_store_dwordx4 v[20:23], v31, %s, %s offen sc1'%(s(S_WS,4),s(sT3)))
    I('s_mov_b64 exec, -1')
    a.label('L_x2w')
    if o['x2wait']: I('s_waitcnt vmcnt(%d)'%0)
    a.label('L_x2')
    I('s_add_u32 %s, %s, 1'%(s(sCNT),s(sCNT)))
    I('s_and_b32 %s, %s, %d'%(s(sT3),s(sCNT),o['bmask2'])); I('s_cselect_b32 %s, 0, %d'%(s(sT3),BOFF))
    I('s_add_u32 %s, %s, %s'%(s(sT0),s(sT3),s(sT1))); I('s_add_u32 %s, %s, %s'%(s(sT3),s(sT3),s(sT2)))
    I('buffer_load_dwordx4 %s, v14, %s, %s offen sc1'%(v(vP,4),s(S_WS,4),s(sT0)))
    I('buffer_load_dwordx4 %s, v15, %s, %s offen sc1'%(v(vP+4,4),s(S_WS,4),s(sT3)))
    I('s_cmp_gt_u32 %s, 200000'%s(sCNT)); I('s_cbranch_scc1 L_fin')
    I('s_waitcnt vmcnt(0)')
    I('v_xor_b32 v16, %s, %s'%(s(sTAG),v(vP+1)))
    for k in (3,5,7): I('v_bitop3_b32 v16, %s, %s, v16 bitop3:0xbe'%(v(vP+k),s(sTAG)))
    I('v_cmp_ne_u32 vcc, 0, v16')
    DPP('v_max_f32',16,vP+4,vP+4,'quad_perm:[1,0,3,2]')
    I('s_nop 1')
    DPP('v_max_f32',16,16,16,'quad_perm:[2,3,0,1]')
    I('v_sub_f32 v16, %s, v16'%v(vP+4))
    I('s_cbranch_vccnz L_x2')
    STAMP(6)
    I('v_mul_f32 v16, %s, v16'%s(sC2)); I('v_exp_f32 v16, v16')
    I('v_mul_f32 v17, v16, %s'%v(vP+6)); I('v_mul_f32 v18, v16, %s'%v(vP)); I('v_mul_f32 v19, v16, %s'%v(vP+2))
    for ctrl in ('quad_perm:[1,0,3,2]','quad_perm:[2,3,0,1]'):
        for k in range(3): DPP('v_add_f32',17+k,17+k,17+k,ctrl)
    I('v_rcp_f32 v17, v17'); I('v_mul_f32 v18, v18, %s'%v(vGT)); I('v_mul_f32 v19, v19, %s'%v(vGT))
    I('v_mul_f32 v18, v17, v18'); I('v_mul_f32 v19, v17, v19')
    I('v_cvt_pk_bf16_f32 v18, v18, v18'); I('v_cvt_pk_bf16_f32 v19, v19, v19')
    I('s_cmp_lt_u32 %s, 43'%s(sHASF))
    for t in range(2):
        for r in range(4): I('v_and_b32 %s, %s, %s'%(v(vK+4*t+r),v(18+t),v(vM+r)))
    I('v_mfma_f32_16x16x32_bf16 v[16:19], %s, %s, 0'%(v(vK,4),v(vWO,4)))
    I('v_mfma_f32_16x16x32_bf16 v[16:19], %s, %s, v[16:19]'%(v(vK+4,4),v(vWO+4,4)))
    I('s_cbranch_scc0 L_nowd2')
    I('v_mfma_f32_16x16x32_bf16 v[16:19], %s, %s, v[16:19]'%(v(vQB,4),v(vWD,4)))
    a.label('L_nowd2')
    I('s_lshl_b32 %s, %s, 9'%(s(sT0),s(sW))); I('v_add_u32 v13, %s, v13'%s(sT0))
    I('v_lshlrev_b32 v12, 10, %s'%v(vL))
    I('s_cmp_lt_u32 %s, 2'%s(sW))
    I('ds_write_b128 v30, v[16:19] offset:%d'%L_AP)
    I('s_waitcnt lgkmcnt(0)'); I('s_barrier')
    STAMP(7)
    I('s_cbranch_scc0 L_cons')
    for w in range(8): I('ds_read_b64 %s, v13 offset:%d'%(v(R+2*w,2),L_AP+w*1024))
    I('s_waitcnt lgkmcnt(0)')
    sum8()
    I('buffer_store_dwordx4 v[20:23], v31, %s, %s offen sc1'%(s(S_WS,4),s(sOFF)))
    I('s_branch L_fin')
    a.label('L_cons')
    I('s_cmp_eq_u32 %s, 2'%s(sW)); I('s_cbranch_scc0 L_fin')
    a.label('L_x3')
    I('buffer_load_dwordx4 %s, v12, %s, %s offen sc1'%(v(vP,4),s(S_WS,4),s(sPB)))
    I('buffer_load_dwordx4 %s, v12, %s, %s offen offset:16 sc1'%(v(vP+4,4),s(S_WS,4),s(sPB)))
    I('s_add_u32 %s, %s, 1'%(s(sCNT),s(sCNT))); I('s_cmp_gt_u32 %s, 400000'%s(sCNT)); I('s_cbranch_scc1 L_fin')
    I('s_waitcnt vmcnt(0)')
    I('v_xor_b32 v16, %s, %s'%(s(sTAG),v(vP+1)))
    for k in (3,5,7): I('v_bitop3_b32 v16, %s, %s, v16 bitop3:0xbe'%(v(vP+k),s(sTAG)))
    I('v_cmp_ne_u32 vcc, 0, v16')
    I('s_nop 4')
    I('s_cbranch_vccnz L_x3')
    STAMP(8)
    allreduce([vP,vP+2,vP+4,vP+6], tmp=16)
    I('v_cvt_pk_bf16_f32 v24, %s, %s'%(v(vP),v(vP+2))); I('v_cvt_pk_bf16_f32 v25, %s, %s'%(v(vP+4),v(vP+6)))
    I('v_mov_b32 v12, 0')
    I('s_mov_b64 exec, 1')
    I('buffer_store_dwordx2 v[24:25], v12, %s, %s offen'%(s(S_OUT,4),s(sC1)))
    I('s_cmp_eq_u32 s2, 0'); I('s_cbranch_scc0 L_fin')
    I('buffer_store_dword v21, v12, %s, 0 offen sc1'%s(S_WS,4))
    a.label('L_fin')
    if stamp:
        NS=10
        I('s_memrealtime %s'%s(sST+2*9,2)); I('s_memtime s[98:99]')
        I('s_getreg_b32 %s, hwreg(HW_REG_XCC_ID)'%s(sT1))
        I('s_getreg_b32 %s, hwreg(HW_REG_HW_ID)'%s(sT2))
        I('v_lshrrev_b32 v8, 6, v0'); I('s_mov_b64 exec, 1'); I('v_readfirstlane_b32 %s, v8'%s(sW))
        I('s_waitcnt lgkmcnt(0)')
        I('s_lshl_b32 %s, s2, 4'%s(sT0)); I('s_add_u32 %s, %s, %s'%(s(sT0),s(sT0),s(sW))); I('s_lshl_b32 %s, %s, 7'%(s(sT0),s(sT0)))
        I('s_add_u32 %s, %s, %d'%(s(sT0),s(sT0),W_ST))
        I('v_mov_b32 v12, 0')
        for k in range(NS):
            I('v_mov_b32 v16, %s'%s(sST+2*k))
            I('buffer_store_dword v16, v12, %s, %s offen offset:%d'%(s(S_WS,4),s(sT0),4*k))
        I('s_sub_u32 s98, s98, s96'); I('v_mov_b32 v16, s98'); I('buffer_store_dword v16, v12, %s, %s offen offset:112'%(s(S_WS,4),s(sT0)))
        I('v_mov_b32 v16, %s'%s(sCNT)); I('buffer_store_dword v16, v12, %s, %s offen offset:108'%(s(S_WS,4),s(sT0)))
        I('v_mov_b32 v16, %s'%s(sT1)); I('buffer_store_dword v16, v12, %s, %s offen offset:120'%(s(S_WS,4),s(sT0)))
        I('v_mov_b32 v16, %s'%s(sT2)); I('buffer_store_dword v16, v12, %s, %s offen offset:124'%(s(S_WS,4),s(sT0)))
    a.label('L_end')
    I('s_endpgm')
    return a, LDS_BYTES, 640

def wrap(lines, nv, ns, lds, block, align=True):
    acc=(nv+3)//4*4
    out=HDR+'; @launch grid=(256,1,1) block=(%d,1,1) lds=%d\n'%(block,lds)
    out+='.amdgcn_target "amdgcn-amd-amdhsa--gfx950"\n.text\n.globl %s_kernel\n'%NAME
    if align: out+='.p2align 12\n.fill 832, 4, 0xbf800000\n'
    out+='.p2align 8\n.type %s_kernel,@function\n%s_kernel:\n'%(NAME,NAME)
    out+='\n'.join(lines)+'\n'
    out+='''.section .rodata,"a"
.p2align 6
.amdhsa_kernel %s_kernel
  .amdhsa_next_free_vgpr %d
  .amdhsa_next_free_sgpr %d
  .amdhsa_accum_offset %d
  .amdhsa_group_segment_fixed_size 0
  .amdhsa_kernarg_size 104
  .amdhsa_user_sgpr_count 2
  .amdhsa_user_sgpr_kernarg_segment_ptr 1
  .amdhsa_system_sgpr_workgroup_id_x 1
.end_amdhsa_kernel
'''%(NAME,nv,ns,acc)
    return out

def sizes(lines):
    src='.amdgcn_target "amdgcn-amd-amdhsa--gfx950"\n.text\n'+'\n'.join(lines)+'\n'+'\n'.join('L_pad%d:'%p for p in range(16) if ('L_pad%d:'%p) not in lines)+'\ns_endpgm\n'
    open('_sz.s','w').write(src)
    subprocess.check_call([CL+'clang','-x','assembler','-target','amdgcn-amd-amdhsa','-mcpu=gfx950','-c','_sz.s','-o','_sz.o'])
    dis=subprocess.check_output([CL+'llvm-objdump','-d','--mcpu=gfx950','_sz.o'],text=True)
    addrs=[int(m.group(1),16) for m in re.finditer(r'// ([0-9A-F]{12}):',dis)]
    out=[]; k=0
    for l in lines:
        t=l.strip()
        if not t or t.startswith(';') or t.endswith(':'): out.append(0)
        else: out.append(addrs[k+1]-addrs[k]); k+=1
    return out

def gen(stamp=False, opts=None, bodyf=body):
    o=dict(nt=True, prio=True, b0=False, pads=True, pdelay=0, align=True, padstep=1024, D=3, first=1, dual=True, bmask=3, bmask2=7, warm2=True, x2wait=True)
    o.update(opts or {})
    a,lds,block=bodyf(stamp,o,0)
    lines=a.lines
    if o['pads']:
        tot=sum(sizes(lines)); npads=min(8,(tot+64)//o['padstep'])
        a,lds,block=bodyf(stamp,o,npads)
        lines=list(a.lines); sz=sizes(lines)
        out=[]; addr=0; p=0
        for l,z in zip(lines,sz):
            if p<npads and z and addr>=o['padstep']*(p+1):
                out.append('L_pad%d:'%p); out.append('    s_cbranch_execz L_back'); addr+=4; p+=1
            out.append(l); addr+=z
        assert p==npads, (p,npads)
        lines=out
    nv=a.maxv+1; ns=max(a.maxs+1,16)
    info=dict(nv=nv,ns=ns,nops=a.nops,bytes=sum(sizes(lines)))
    z=sizes(lines); ad=0
    for l,k in zip(lines,z):
        if l.endswith(':'): info[l[:-1]]=ad
        ad+=k
    return wrap(lines,nv,ns,lds,block,o['align']),info

if __name__=='__main__':
    import argparse, json
    ap=argparse.ArgumentParser(); ap.add_argument('-o',required=True); ap.add_argument('--stamp',action='store_true')
    ap.add_argument('--opts',default='{}')
    ar=ap.parse_args()
    t,info=gen(stamp=ar.stamp,opts=json.loads(ar.opts))
    open(ar.o,'w').write(t); print(info)
```

```python
import sys, subprocess, re, os
from asmlib import Asm

NAME='gated_mix__sliding_block_cached__glu_gated_bilinear__decode'
HDR=open('cdna_kernels/%s.s.ref'%NAME).read().split('; Override launch')[0]
CL='bin/'

def body(stamp, o, npads):
    a=Asm(); I=a.I
    NT=' nt' if o['nt'] else ''
    S_X,S_K,S_V,S_WQ,S_WO,S_WD,S_GW,S_OUT,S_WS = 8,12,16,20,24,28,32,36,40
    S_WG,S_WU = 44,46
    sTAG,sW,sH,sB,sJ,sT0,sT1,sT2,sOFF,sCNT,sC1,sC2,sFB,sRH,sCQ,sGRP,sT3,sHASF,sPB = 48,49,50,51,52,53,54,55,56,57,58,59,60,61,62,63,4,5,6
    sST=64
    vL=1; vG=2; vJ=3; vM=4
    vQB=32; vK=48; vV=80; vWO=112; vWD=120; vP=124; vMX=132; vH=133; vGT=134
    vX=32; vA=40; vW=52; GX=116
    def v(n,c=1): return 'v%d'%n if c==1 else 'v[%d:%d]'%(n,n+c-1)
    def s(n,c=1): return 's%d'%n if c==1 else 's[%d:%d]'%(n,n+c-1)
    L_Q=0; L_G=256; L_H=512; L_MX=768; L_LW=832; L_OP=1024; L_AP=5120; LDS_BYTES=13312
    W_XQ=4096; W_XF=W_XQ+256*2048; W_XO=W_XF+22*8*2048; W_XM=W_XO+256*1024; W_XA=W_XM+256*128; W_END0=W_XA+512*1024
    BOFF=W_XA-4096 if o['dual'] else 0
    BOFF=(W_END0-W_XQ) if o['dual'] else 0
    W_END0=W_END0+(W_XA-W_XQ if o['dual'] else 0)
    W_ST=4194304
    assert W_END0<=W_ST
    W_END=W_ST+256*16*128 if stamp else W_END0
    def STAMP(k):
        if stamp: I('s_memrealtime %s'%s(sST+2*k,2))
    def DPP(op,d,x,y,ctrl): I('%s_dpp %s, %s, %s %s row_mask:0xf bank_mask:0xf'%(op,v(d),v(x),v(y),ctrl))
    def DPPM(d,x,ctrl): I('v_mov_b32_dpp %s, %s %s row_mask:0xf bank_mask:0xf'%(v(d),v(x),ctrl))
    def allreduce(regs, op='v_add_f32', tmp=21, first=0):
        for ctrl in ('quad_perm:[1,0,3,2]','quad_perm:[2,3,0,1]','row_half_mirror','row_mirror')[first:]:
            for r in regs: DPP(op,r,r,r,ctrl)
        for sw in ('v_permlane16_swap_b32','v_permlane32_swap_b32'):
            for k,r in enumerate(regs): I('v_mov_b32 %s, %s'%(v(tmp+k),v(r)))
            for k,r in enumerate(regs): I('%s %s, %s'%(sw,v(r),v(tmp+k)))
            for k,r in enumerate(regs): I('%s %s, %s, %s'%(op,v(r),v(r),v(tmp+k)))
    def masks():
        I('v_and_b32 v16, 1, v0'); I('v_lshlrev_b32 v16, 4, v16'); I('v_mov_b32 v17, 0xffff'); I('v_lshlrev_b32 v16, v16, v17')
        I('v_bfe_u32 v17, v0, 1, 2')
        for r in range(4):
            I('v_cmp_eq_u32 %s, %d, v17'%(s(84+2*r,2),r))
        for r in range(4):
            I('v_cndmask_b32 %s, 0, v16, %s'%(v(vM+r),s(84+2*r,2)))
    def srd_consts(lst):
        for (r,n) in lst:
            I('s_mov_b32 %s, 0x%x'%(s(r+2),n)); I('s_mov_b32 %s, 0x20000'%s(r+3))

    I('s_cmp_ge_u32 s2, 256'); I('s_cbranch_scc1 L_end')
    STAMP(0)
    if stamp: I('s_memtime s[96:97]')
    for (r,off) in ((S_WQ,24),(S_X,0),(S_WG,48),(S_WU,56),(S_K,8),(S_V,16),(S_WS,96),(S_GW,72),(S_WD,64),(S_WO,32),(S_OUT,80)):
        I('s_load_dwordx2 %s, s[0:1], %d'%(s(r,2),off))
    I('v_lshrrev_b32 v8, 6, v0')
    I('v_and_b32 %s, 63, v0'%v(vL))
    I('v_readfirstlane_b32 %s, v8'%s(sW))
    I('v_bfe_u32 %s, v0, 4, 2'%v(vG))
    I('v_and_b32 %s, 15, v0'%v(vJ))
    I('s_and_b32 %s, s2, 7'%s(sT0)); I('s_lshr_b32 %s, s2, 6'%s(sT1))
    I('s_lshl2_add_u32 %s, %s, %s'%(s(sH),s(sT0),s(sT1)))
    I('s_lshl3_add_u32 %s, %s, %s'%(s(sFB),s(sT1),s(sT0)))
    I('s_bfe_u32 %s, s2, 0x30003'%s(sJ))
    I('s_cmp_lt_u32 %s, 2'%s(sW)); I('s_cbranch_scc0 L_str')
    if o['prio']: I('s_setprio 3')
    if o.get('noaux'):
        srd_consts(((S_WS,W_END),)); I('s_waitcnt lgkmcnt(0)'); I('s_branch L_adone')
    srd_consts(((S_X,2048),(S_WQ,1<<22),(S_GW,1024)))
    I('s_lshl_b32 %s, %s, 6'%(s(sT0),s(sJ))); I('v_lshl_add_u32 v9, %s, 4, %s'%(v(vG),s(sT0)))
    I('v_lshlrev_b32 v11, 7, v0'); I('v_and_b32 v11, 1024, v11'); I('v_lshl_add_u32 v11, v9, 1, v11')
    I('s_cmp_eq_u32 %s, 1'%s(sW)); I('s_cbranch_scc1 L_auxf')
    I('s_lshl_b32 %s, %s, 8'%(s(sOFF),s(sH)))
    I('v_lshlrev_b32 v10, 13, v9'); I('v_lshl_add_u32 v10, %s, 4, v10'%v(vJ))
    I('s_waitcnt lgkmcnt(0)')
    STAMP(1)
    a.VM('x0','buffer_load_dwordx4 %s, v11, %s, 0 offen'%(v(vX,4),s(S_X,4)))
    a.VM('x1','buffer_load_dwordx4 %s, v11, %s, 0 offen offset:16'%(v(vX+4,4),s(S_X,4)))
    for t in range(16):
        a.VM('w%d'%t,'buffer_load_dwordx4 %s, v10, %s, %s offen%s'%(v(vW+4*t,4),s(S_WQ,4),s(sOFF),NT))
        if t<15: I('s_addk_i32 %s, 0x2000'%s(sOFF))
    I('s_branch L_auxc')
    a.label('L_auxf')
    I('v_lshlrev_b32 v10, 4, %s'%v(vL))
    I('s_cmp_eq_u32 %s, 21'%s(sFB)); I('s_cselect_b32 %s, 3, 7'%s(sT1))
    I('v_mul_u32_u24 v20, 2752, v9')
    I('v_and_b32 v21, %s, v0'%s(sT1)); I('v_lshl_add_u32 v20, v21, 4, v20')
    I('s_lshl_b32 %s, %s, 7'%(s(sT0),s(sFB))); I('s_addk_i32 %s, 2752'%s(sT0)); I('v_add_u32 v20, %s, v20'%s(sT0))
    I('v_cmp_gt_u32 vcc, 8, %s'%v(vJ))
    I('s_cmp_lt_u32 %s, 22'%s(sFB))
    I('s_waitcnt lgkmcnt(0)')
    STAMP(1)
    I('buffer_load_dwordx4 %s, v10, %s, 0 offen'%(v(GX,4),s(S_X,4)))
    I('buffer_load_dwordx4 %s, v10, %s, 0 offen offset:1024'%(v(GX+4,4),s(S_X,4)))
    I('buffer_load_dwordx4 %s, v10, %s, 0 offen'%(v(GX+8,4),s(S_GW,4)))
    I('s_cbranch_scc0 L_auxc')
    I('buffer_load_dwordx4 %s, v11, %s, 0 offen'%(v(vX,4),s(S_X,4)))
    I('buffer_load_dwordx4 %s, v11, %s, 0 offen offset:16'%(v(vX+4,4),s(S_X,4)))
    I('v_mov_b32 v18, %s'%s(S_WU)); I('v_mov_b32 v19, %s'%s(S_WU+1)); I('v_mov_b32 v16, %s'%s(S_WG)); I('v_mov_b32 v17, %s'%s(S_WG+1))
    I('v_cndmask_b32 v18, v18, v16, vcc'); I('v_cndmask_b32 v19, v19, v17, vcc')
    I('v_mov_b32 v21, 0'); I('s_mov_b32 %s, %d'%(s(84),3*2752)); I('s_mov_b32 %s, 0'%s(85))
    I('v_lshl_add_u64 v[18:19], v[18:19], 0, v[20:21]')
    for t in range(16):
        k=t%3
        if t and k==0: I('v_lshl_add_u64 v[18:19], v[18:19], 0, s[84:85]')
        I('global_load_dwordx4 %s, v[18:19], off offset:%d%s'%(v(vW+4*t,4),(k-1)*2752,NT))
    I('s_branch L_auxc')
    a.label('L_str')
    vm_aux=a.vm; a.vm=[]
    I('s_sub_u32 %s, %s, 2'%(s(sW),s(sW)))
    srd_consts(((S_K,1<<26),(S_V,1<<26)))
    I('s_lshr_b32 %s, %s, 2'%(s(sB),s(sJ)))
    I('s_lshl_b32 %s, %s, 5'%(s(sT0),s(sB))); I('s_add_u32 %s, %s, %s'%(s(sT0),s(sT0),s(sH))); I('s_lshl_b32 %s, %s, 7'%(s(sT0),s(sT0)))
    I('s_and_b32 %s, %s, 3'%(s(sT1),s(sJ))); I('s_lshl3_add_u32 %s, %s, %s'%(s(sT1),s(sT1),s(sW))); I('s_add_u32 %s, %s, %s'%(s(sT0),s(sT0),s(sT1)))
    I('s_addk_i32 %s, 96'%s(sT0)); I('s_lshl_b32 %s, %s, 13'%(s(sT2),s(sT0))); I('s_add_u32 %s, %s, 4096'%(s(sT3),s(sT2)))
    I('v_lshlrev_b32 v12, 6, v0'); I('v_and_b32 v12, 0x300, v12')
    I('v_and_b32 v13, 3, v0'); I('v_lshl_add_u32 v13, %s, 2, v13'%v(vG))
    I('v_lshlrev_b32 v11, 4, v13')
    I('v_add_u32 v12, v12, v11')
    I('v_lshlrev_b32 v13, 4, %s'%v(vL))
    def kv(idx):
        n=idx&7
        if idx<8: a.VM('k%d'%n,'buffer_load_dwordx4 %s, v12, %s, %s offen offset:%d%s'%(v(vK+4*n,4),s(S_K,4),s(sT3 if n>=4 else sT2),(n&3)*1024,NT))
        else: a.VM('v%d'%n,'buffer_load_dwordx4 %s, v13, %s, %s offen offset:%d%s'%(v(vV+4*n,4),s(S_V,4),s(sT3 if n>=4 else sT2),(n&3)*1024,NT))
    I('s_waitcnt lgkmcnt(0)')
    if o['b0']: I('s_barrier')
    STAMP(1)
    for idx in range(o['first']): kv(idx)
    if npads:
        I('s_mov_b64 exec, 0')
        for p in range(npads):
            I('s_cmp_eq_u32 %s, %d'%(s(sW),p%8)); I('s_cbranch_scc1 L_pad%d'%p) if p<8 else None
        a.label('L_back')
        I('s_mov_b64 exec, -1')
    I('s_branch L_str2')
    vm_str=a.vm
    a.label('L_auxc')
    a.vm=vm_aux
    if o['b0']: I('s_barrier')
    I('s_load_dword %s, %s, 0'%(s(sTAG),s(S_WS,2)))
    STAMP(2)
    srd_consts(((S_WS,W_END),))
    I('s_and_b32 %s, %s, 1'%(s(sRH),s(sJ)))
    I('s_lshl1_add_u32 %s, %s, %s'%(s(sHASF),s(sFB),s(sRH)))
    I('s_mov_b32 %s, 0x3fb8aa3b'%s(sC2))
    I('v_lshlrev_b32 v8, 4, %s'%v(vL)); I('v_and_b32 v9, 512, v8'); I('v_add_u32 v9, v9, v8')
    I('s_cmp_eq_u32 %s, 1'%s(sW)); I('s_cbranch_scc1 L_f1')
    I('s_lshl_b32 %s, %s, 14'%(s(sPB),s(sH))); I('s_add_u32 %s, %s, %d'%(s(sPB),s(sPB),W_XQ))
    I('s_lshr_b32 %s, %s, 2'%(s(sT0),s(sJ)))
    I('s_branch L_f2')
    a.label('L_f1')
    I('s_cmp_lt_u32 %s, 22'%s(sFB)); I('s_cbranch_scc1 L_f1b')
    I('s_waitcnt vmcnt(0)'); I('s_branch L_gate')
    a.label('L_f1b')
    I('v_bfe_u32 v8, v0, 2, 1'); I('v_lshlrev_b32 v8, 9, v8')
    I('v_bfe_u32 v10, v0, 3, 1'); I('v_lshl_add_u32 v8, v10, 8, v8')
    I('v_lshl_add_u32 v8, %s, 6, v8'%v(vG))
    I('v_and_b32 v10, 3, v0'); I('v_lshl_add_u32 v8, v10, 4, v8')
    I('s_lshl_b32 %s, %s, 14'%(s(sPB),s(sFB))); I('s_add_u32 %s, %s, %d'%(s(sPB),s(sPB),W_XF))
    I('s_mov_b32 %s, %s'%(s(sT0),s(sRH)))
    a.label('L_f2')
    I('s_lshl_b32 %s, %s, 11'%(s(sOFF),s(sJ))); I('s_add_u32 %s, %s, %s'%(s(sOFF),s(sOFF),s(sPB)))
    I('s_lshl_b32 %s, %s, 9'%(s(sT0),s(sT0))); I('s_add_u32 %s, %s, %s'%(s(sPB),s(sPB),s(sT0)))
    masks()
    I('v_mov_b32 v18, 0x0c0c0c0c'); I('s_mov_b32 %s, 0x01000100'%s(sT0)); I('s_mov_b32 %s, 0x03020302'%s(sT1))
    for r in range(4):
        I('v_bfi_b32 %s, %s, %s, v18'%(v(20+r),v(vM+r),s(sT0)))
        I('v_bfi_b32 %s, %s, %s, v18'%(v(24+r),v(vM+r),s(sT1)))
    a.wait_vm('x1')
    for t in range(16):
        ar=vA+4*(t%3)
        for r in range(4):
            I('v_perm_b32 %s, %s, %s, %s'%(v(ar+r),v(vX+t//2),v(vX+t//2),v((24 if t&1 else 20)+r)))
        if t%2==0: a.wait_vm('w%d'%(t+1))
        I('v_mfma_f32_16x16x32_bf16 v[12:15], %s, %s, %s'%(v(ar,4),v(vW+4*t,4),'0' if t==0 else 'v[12:15]'))
    STAMP(3)
    I('s_waitcnt lgkmcnt(0)')
    I('s_add_u32 %s, %s, 0x9e3779b9'%(s(sTAG),s(sTAG)))
    I('v_mov_b32 v17, %s'%s(sTAG)); I('v_mov_b32 v19, %s'%s(sTAG)); I('v_mov_b32 v21, %s'%s(sTAG)); I('v_mov_b32 v23, %s'%s(sTAG))
    I('s_mov_b32 %s, 0'%s(sCNT))
    I('v_mov_b32 v16, v12'); I('v_mov_b32 v18, v13'); I('v_mov_b32 v20, v14'); I('v_mov_b32 v22, v15')
    if o.get('nopub1'): I('s_branch L_adone')
    if o['dual']:
        I('buffer_store_dwordx4 v[16:19], v8, %s, %s offen'%(s(S_WS,4),s(sOFF)))
        I('buffer_store_dwordx4 v[20:23], v8, %s, %s offen offset:1024'%(s(S_WS,4),s(sOFF)))
        I('s_add_u32 %s, %s, %d'%(s(sOFF),s(sOFF),BOFF))
    I('buffer_store_dwordx4 v[16:19], v8, %s, %s offen sc1'%(s(S_WS,4),s(sOFF)))
    I('buffer_store_dwordx4 v[20:23], v8, %s, %s offen offset:1024 sc1'%(s(S_WS,4),s(sOFF)))
    if o.get('nopoll1'): I('s_branch L_adone')
    I('s_cmp_eq_u32 %s, 0'%s(sW)); I('s_cbranch_scc1 L_pdel')
    a.label('L_gate')
    I('s_waitcnt vmcnt(%d)'%(4 if o['dual'] else 2))
    for bb in range(2):
        for k in range(4):
            I('v_lshlrev_b32 v12, 16, %s'%v(GX+4*bb+k)); I('v_and_b32 v13, 0xffff0000, %s'%v(GX+4*bb+k))
            I('v_lshlrev_b32 v14, 16, %s'%v(GX+8+k)); I('v_and_b32 v15, 0xffff0000, %s'%v(GX+8+k))
            I('v_pk_mul_f32 v[12:13], v[12:13], v[14:15]')
            I('v_cvt_pk_bf16_f32 v12, v12, v13')
            I('v_and_b32 v13, 0xffff0000, v12'); I('v_lshlrev_b32 v12, 16, v12')
            if k==0: I('v_add_f32 %s, v12, v13'%v(28+bb))
            else: I('v_add_f32 v12, v12, v13'); I('v_add_f32 %s, %s, v12'%(v(28+bb),v(28+bb)))
    I('v_permlane32_swap_b32 v28, v29'); I('v_add_f32 v28, v28, v29')
    for ctrl in ('quad_perm:[1,0,3,2]','quad_perm:[2,3,0,1]','row_half_mirror','row_mirror'): DPP('v_add_f32',28,28,28,ctrl)
    I('v_mov_b32 v29, v28'); I('v_permlane16_swap_b32 v28, v29'); I('v_add_f32 v28, v28, v29')
    I('v_cvt_pk_bf16_f32 v28, v28, v28'); I('v_lshlrev_b32 v28, 16, v28')
    I('v_mul_f32 v28, %s, v28'%s(sC2)); I('v_exp_f32 v28, -v28'); I('v_add_f32 v28, 1.0, v28'); I('v_rcp_f32 v28, v28')
    I('v_cvt_pk_bf16_f32 v28, v28, v28'); I('v_lshlrev_b32 v28, 16, v28')
    I('v_sub_f32 v29, 1.0, v28'); I('v_cvt_pk_bf16_f32 v29, v29, v29'); I('v_lshlrev_b32 v29, 16, v29')
    I('v_lshrrev_b32 v30, 5, %s'%v(vL)); I('v_lshlrev_b32 v31, 2, v30')
    I('ds_write_b32 v31, v28 offset:%d'%L_G)
    I('v_mov_b32 v28, v29'); I('v_and_b32 v31, 8, v0'); I('v_cmp_eq_u32 vcc, 0, v31'); I('v_permlane32_swap_b32 v28, v29')
    I('v_cndmask_b32 v29, v29, v28, vcc')
    I('s_cmp_lt_u32 %s, 43'%s(sHASF)); I('s_cbranch_scc0 L_adone')
    I('s_branch L_p1')
    a.label('L_pdel')
    if o['pdelay']: I('s_sleep %d'%o['pdelay'])
    a.label('L_p1')
    I('s_add_u32 %s, %s, 1'%(s(sCNT),s(sCNT))); I('s_cmp_gt_u32 %s, 200000'%s(sCNT)); I('s_cbranch_scc1 L_fin')
    I('s_and_b32 %s, %s, %d'%(s(sT0),s(sCNT),o['bmask'])); I('s_cselect_b32 %s, 0, %d'%(s(sT0),BOFF)); I('s_add_u32 %s, %s, %s'%(s(sT0),s(sT0),s(sPB)))
    I('s_add_u32 %s, %s, 4096'%(s(sT1),s(sT0))); I('s_add_u32 %s, %s, 8192'%(s(sT2),s(sT0))); I('s_add_u32 %s, %s, 12288'%(s(sT3),s(sT0)))
    for jj in range(8):
        I('buffer_load_dwordx4 %s, v9, %s, %s offen offset:%d sc1'%(v(vW+4*jj,4),s(S_WS,4),s([sT0,sT1,sT2,sT3][jj>>1]),(jj&1)*2048))
    I('s_waitcnt vmcnt(0)')
    I('v_xor_b32 v16, %s, %s'%(s(sTAG),v(vW+1))); I('v_xor_b32 v17, %s, %s'%(s(sTAG),v(vW+3)))
    for k in range(1,8):
        I('v_bitop3_b32 v16, %s, %s, v16 bitop3:0xbe'%(v(vW+4*k+1),s(sTAG)))
        I('v_bitop3_b32 v17, %s, %s, v17 bitop3:0xbe'%(v(vW+4*k+3),s(sTAG)))
    I('v_or_b32 v16, v16, v17'); I('v_cmp_ne_u32 vcc, 0, v16'); I('s_nop 4'); I('s_cbranch_vccnz L_p1')
    for (x,y) in ((0,4),(1,5),(2,6),(3,7),(0,2),(1,3)):
        I('v_add_f32 %s, %s, %s'%(v(vW+4*x),v(vW+4*x),v(vW+4*y))); I('v_add_f32 %s, %s, %s'%(v(vW+4*x+2),v(vW+4*x+2),v(vW+4*y+2)))
    I('v_add_f32 v16, %s, %s'%(v(vW),v(vW+4))); I('v_add_f32 v17, %s, %s'%(v(vW+2),v(vW+6)))
    I('v_cvt_pk_bf16_f32 v16, v16, v17')
    I('s_cmp_eq_u32 %s, 0'%s(sW)); I('s_cbranch_scc0 L_hh')
    I('v_lshlrev_b32 v10, 4, %s'%v(vJ)); I('v_bfe_u32 v11, v0, 4, 1'); I('v_lshl_add_u32 v10, v11, 3, v10')
    I('v_bfe_u32 v11, v0, 5, 1'); I('v_lshl_add_u32 v10, v11, 2, v10')
    I('ds_write_b32 v10, v16 offset:%d'%L_Q)
    I('s_branch L_adone')
    a.label('L_hh')
    I('v_mov_b32 v17, v16'); I('v_permlane16_swap_b32 v16, v17')
    I('v_lshlrev_b32 v18, 16, v16'); I('v_lshlrev_b32 v19, 16, v17'); I('v_and_b32 v16, 0xffff0000, v16'); I('v_and_b32 v17, 0xffff0000, v17')
    I('v_mul_f32 v18, v18, v19'); I('v_mul_f32 v16, v16, v17')
    I('v_cvt_pk_bf16_f32 v16, v18, v16')
    I('v_lshlrev_b32 v18, 16, v16'); I('v_and_b32 v16, 0xffff0000, v16')
    I('v_mul_f32 v18, v18, v29'); I('v_mul_f32 v16, v16, v29')
    I('v_cvt_pk_bf16_f32 v18, v18, v18'); I('v_cvt_pk_bf16_f32 v19, v16, v16')
    I('v_lshlrev_b32 v30, 3, v30'); I('v_and_b32 v31, 3, v0'); I('v_lshl_add_u32 v30, v31, 5, v30')
    I('v_and_b32 v31, 4, v0'); I('v_lshl_add_u32 v30, v31, 2, v30'); I('v_and_b32 v31, 8, v0'); I('v_lshl_add_u32 v30, v31, 4, v30')
    I('ds_write_b64 v30, v[18:19] offset:%d'%L_H)
    a.label('L_adone')
    STAMP(4)
    I('s_waitcnt lgkmcnt(0)'); I('s_barrier')
    I('s_branch L_fin')

    a.label('L_str2')
    a.vm=vm_str
    D=o['D']
    for idx in range(o['first'],D): kv(idx)
    I('s_load_dword %s, %s, 0'%(s(sTAG),s(S_WS,2)))
    srd_consts(((S_WO,1<<22),(S_WD,1376*1024),(S_OUT,2048),(S_WS,W_END)))
    I('s_and_b32 %s, %s, 1'%(s(sRH),s(sJ))); I('s_lshr_b32 %s, %s, 1'%(s(sCQ),s(sJ)))
    I('s_lshl_b32 %s, %s, 3'%(s(sGRP),s(sH)))
    I('s_lshl1_add_u32 %s, %s, %s'%(s(sHASF),s(sFB),s(sRH)))
    masks()
    I('s_lshl_b32 %s, %s, 7'%(s(sT0),s(sH))); I('s_lshl_b32 %s, %s, 6'%(s(sT1),s(sRH))); I('s_add_u32 %s, %s, %s'%(s(sT0),s(sT0),s(sT1)))
    I('s_lshl3_add_u32 %s, %s, %s'%(s(sT0),s(sW),s(sT0)))
    I('s_lshl_b32 %s, %s, 8'%(s(sT1),s(sCQ)))
    I('v_lshl_add_u32 v10, %s, 4, %s'%(v(vJ),s(sT1)))
    I('v_lshl_add_u32 v9, %s, 1, %s'%(v(vG),s(sT0))); I('v_lshl_add_u32 v9, v9, 10, v10')
    I('s_lshl_b32 %s, %s, 5'%(s(sT0),s(sHASF))); I('s_lshl_b32 %s, %s, 2'%(s(sT1),s(sW))); I('s_add_u32 %s, %s, %s'%(s(sT0),s(sT0),s(sT1)))
    I('v_add_u32 v8, %s, %s'%(s(sT0),v(vG))); I('v_lshl_add_u32 v8, v8, 10, v10')
    I('v_and_b32 v10, 1, %s'%v(vG)); I('v_lshlrev_b32 v10, 4, v10'); I('v_lshl_add_u32 v10, %s, 5, v10'%v(vJ))
    I('v_bfe_u32 v14, v0, 3, 1'); I('v_and_b32 v15, 3, v0'); I('v_lshl_add_u32 v15, v14, 2, v15')
    I('v_add_u32 v16, %s, %s'%(s(sT1),v(vG)))
    I('v_lshlrev_b32 v17, 2, v16'); I('v_lshl_add_u32 %s, v14, 7, v17'%v(vH))
    I('v_lshlrev_b32 %s, 2, v14'%v(vGT))
    I('v_lshlrev_b32 v16, 4, v16'); I('v_lshl_add_u32 v14, v15, 10, v16'); I('v_lshlrev_b32 v15, 7, v15')
    I('v_lshrrev_b32 v16, 2, %s'%v(vJ))
    for u in range(4): I('v_cmp_eq_u32 %s, %d, v16'%(s(84+2*u,2),u))
    I('s_mov_b32 %s, 0x3db504f3'%s(sC1)); I('s_mov_b32 %s, 0x3fb8aa3b'%s(sC2))
    for idx in range(max(D,o['first']),16):
        if idx<8+D: I('s_waitcnt vmcnt(%d)'%(D-1))
        kv(idx)
    STAMP(2)
    I('s_waitcnt lgkmcnt(0)')
    I('s_add_u32 %s, %s, 0x9e3779b9'%(s(sTAG),s(sTAG)))
    I('s_barrier')
    STAMP(3)
    I('ds_read_b128 v[24:27], v11 offset:%d'%L_Q)
    I('ds_read_b32 %s, %s offset:%d'%(v(vH),v(vH),L_H))
    I('ds_read_b32 %s, %s offset:%d'%(v(vGT),v(vGT),L_G))
    I('s_lshl_b32 %s, %s, 2'%(s(sT0),s(sW))); I('v_mov_b32 v11, %s'%s(sT0)); I('v_mov_b32 v12, 0')
    I('s_waitcnt lgkmcnt(2)')
    for u in range(4):
        for k in range(4): I('v_cndmask_b32 %s, 0, %s, %s'%(v(vQB+4*u+k),v(24+k),s(84+2*u,2)))
    a.wait_vm('k7')
    for u in range(4):
        for G in range(2):
            n=4*G+u; d=16+4*G
            I('v_mfma_f32_16x16x32_bf16 %s, %s, %s, %s'%(v(d,4),v(vK+4*n,4),v(vQB+4*u,4),'0' if u==0 else v(d,4)))
    for G in range(2): DPPM(24+G,16+4*G,'quad_perm:[0,0,0,0]')
    for r in range(1,4):
        for G in range(2): DPP('v_add_f32',24+G,16+4*G+r,24+G,'quad_perm:[%d,%d,%d,%d]'%(r,r,r,r))
    I('v_cvt_pk_bf16_f32 v24, v24, v25')
    I('v_and_b32 v25, 0xffff0000, v24'); I('v_lshlrev_b32 v24, 16, v24')
    I('v_mul_f32 v24, %s, v24'%s(sC1)); I('v_mul_f32 v25, %s, v25'%s(sC1))
    I('v_cvt_pk_bf16_f32 v24, v24, v25')
    I('v_and_b32 v25, 0xffff0000, v24'); I('v_lshlrev_b32 v24, 16, v24')
    I('v_max_f32 v26, v24, v25')
    DPP('v_max_f32',26,26,26,'row_ror:4'); DPP('v_max_f32',26,26,26,'row_ror:8')
    I('v_mov_b32 v27, v26'); I('v_permlane16_swap_b32 v26, v27'); I('v_max_f32 v26, v26, v27')
    I('v_mov_b32 v27, v26'); I('v_permlane32_swap_b32 v26, v27'); I('v_max_f32 v26, v26, v27')
    I('s_mov_b64 exec, 1')
    I('ds_write_b32 v11, v26 offset:%d'%L_MX)
    I('s_mov_b64 exec, -1')
    I('s_waitcnt lgkmcnt(0)'); I('s_barrier')
    I('ds_read_b128 v[16:19], v12 offset:%d'%L_MX); I('ds_read_b128 v[20:23], v12 offset:%d'%(L_MX+16))
    I('s_waitcnt lgkmcnt(0)')
    I('v_max3_f32 v16, v16, v17, v18'); I('v_max3_f32 v20, v20, v21, v22'); I('v_max3_f32 v16, v16, v19, v23'); I('v_max_f32 %s, v16, v20'%v(vMX))
    I('v_sub_f32 v24, v24, %s'%v(vMX)); I('v_sub_f32 v25, v25, %s'%v(vMX))
    I('v_mul_f32 v24, %s, v24'%s(sC2)); I('v_mul_f32 v25, %s, v25'%s(sC2))
    I('v_exp_f32 v24, v24'); I('v_exp_f32 v25, v25')
    I('v_cvt_pk_bf16_f32 v28, v24, v24'); I('v_cvt_pk_bf16_f32 v29, v25, v25')
    I('v_add_f32 v26, v24, v25')
    for n in range(8):
        for r in range(4):
            DPP('v_and_b32',vK+4*n+r,28+(n>>2),vM+r,'row_newbcast:%d'%(4*(n&3)))
    for t in range(2):
        a.VM('wo%d'%t,'buffer_load_dwordx4 %s, v9, %s, 0 offen offset:%d%s'%(v(vWO+4*t,4),s(S_WO,4),t*1024,NT))
    I('s_cmp_lt_u32 %s, 43'%s(sHASF)); I('s_cbranch_scc0 L_nowd')
    a.cond='wd'
    a.VM('wd','buffer_load_dwordx4 %s, v8, %s, 0 offen%s'%(v(vWD,4),s(S_WD,4),NT))
    a.cond=None
    a.label('L_nowd')
    DPP('v_add_f32',26,26,26,'row_ror:4'); DPP('v_add_f32',26,26,26,'row_ror:8')
    I('v_mov_b32 v27, v26'); I('v_permlane16_swap_b32 v26, v27'); I('v_add_f32 v26, v26, v27')
    I('v_mov_b32 v27, v26'); I('v_permlane32_swap_b32 v26, v27'); I('v_add_f32 v26, v26, v27')
    I('s_mov_b64 exec, 1')
    I('ds_write_b32 v11, v26 offset:%d'%L_LW)
    I('s_mov_b64 exec, -1')
    for r in range(4): I('v_and_b32 %s, %s, %s'%(v(vQB+r),v(vH),v(vM+r)))
    I('s_lshl_b32 %s, %s, 9'%(s(sT0),s(sW))); I('v_add_u32 v11, %s, v10'%s(sT0))
    I('s_lshl_b32 %s, %s, 10'%(s(sT0),s(sGRP))); I('s_add_u32 %s, %s, %d'%(s(sT0),s(sT0),W_XO))
    I('s_lshl_b32 %s, %s, 9'%(s(sT1),s(sRH))); I('s_add_u32 %s, %s, %s'%(s(sT1),s(sT1),s(sT0)))
    I('s_lshl_b32 %s, %s, 7'%(s(sT2),s(sGRP))); I('s_add_u32 %s, %s, %d'%(s(sT2),s(sT2),W_XM))
    I('v_lshlrev_b32 v13, 3, %s'%v(vL))
    I('v_lshrrev_b32 v30, 1, %s'%v(vG)); I('v_lshl_add_u32 v30, v30, 9, v10'); I('s_lshl_b32 %s, %s, 10'%(s(sT3),s(sW))); I('v_add_u32 v30, %s, v30'%s(sT3))
    I('s_lshl1_add_u32 %s, %s, %s'%(s(sOFF),s(sCQ),s(sW))); I('s_lshl_b32 %s, %s, 5'%(s(sOFF),s(sOFF))); I('s_add_u32 %s, %s, %s'%(s(sOFF),s(sOFF),s(sH)))
    I('s_lshl1_add_u32 %s, %s, %s'%(s(sOFF),s(sOFF),s(sRH))); I('s_lshl_b32 %s, %s, 10'%(s(sOFF),s(sOFF))); I('s_add_u32 %s, %s, %d'%(s(sOFF),s(sOFF),W_XA))
    I('s_and_b32 %s, s2, 7'%s(sC1)); I('s_bfe_u32 %s, s2, 0x40003'%s(sT3)); I('s_lshl4_add_u32 %s, %s, %s'%(s(sC1),s(sC1),s(sT3)))
    I('s_lshr_b32 %s, s2, 7'%s(sB))
    I('s_lshr_b32 %s, %s, 5'%(s(sPB),s(sC1))); I('s_lshl1_add_u32 %s, %s, %s'%(s(sPB),s(sPB),s(sB))); I('s_lshl_b32 %s, %s, 11'%(s(sPB),s(sPB)))
    I('s_and_b32 %s, %s, 31'%(s(sT3),s(sC1))); I('s_add_u32 %s, %s, %s'%(s(sPB),s(sPB),s(sT3))); I('s_lshl_b32 %s, %s, 5'%(s(sPB),s(sPB)))
    I('s_add_u32 %s, %s, %d'%(s(sPB),s(sPB),W_XA))
    I('s_lshl_b32 %s, %s, 7'%(s(sB),s(sB))); I('s_add_u32 %s, %s, %s'%(s(sC1),s(sC1),s(sB))); I('s_lshl_b32 %s, %s, 3'%(s(sC1),s(sC1)))
    I('v_lshlrev_b32 v31, 4, %s'%v(vL))
    I('v_mov_b32 v21, %s'%s(sTAG)); I('v_mov_b32 v23, %s'%s(sTAG))
    I('s_mov_b32 %s, 0'%s(sCNT))
    if o['warm2']:
        a.VM('wm0','buffer_load_dwordx4 %s, v14, %s, %s offen sc1'%(v(vP,4),s(S_WS,4),s(sT1)))
        a.VM('wm1','buffer_load_dwordx4 %s, v15, %s, %s offen sc1'%(v(vP+4,4),s(S_WS,4),s(sT2)))
    STAMP(4)
    for n in range(8):
        a.wait_vm('v%d'%n)
        I('v_mfma_f32_16x16x32_bf16 v[16:19], %s, %s, %s'%(v(vK+4*n,4),v(vV+4*n,4),'0' if n==0 else 'v[16:19]'))
    STAMP(5)
    I('s_mov_b64 exec, 0xffffffff')
    I('s_cmp_lt_u32 %s, 2'%s(sW))
    I('ds_write_b128 v11, v[16:19] offset:%d'%L_OP)
    I('s_mov_b64 exec, -1')
    I('s_waitcnt lgkmcnt(0)'); I('s_barrier')
    I('s_cbranch_scc0 L_x2w')
    I('s_cmp_eq_u32 %s, 0'%s(sW)); I('s_cbranch_scc0 L_ml')
    R=vV
    for w in range(8): I('ds_read_b64 %s, v13 offset:%d'%(v(R+2*w,2),L_OP+w*512))
    I('s_lshl_b32 %s, %s, 10'%(s(sT3),s(sJ))); I('s_add_u32 %s, %s, %s'%(s(sT3),s(sT3),s(sT0)))
    I('s_waitcnt lgkmcnt(0)')
    def sum8():
        for (x,y) in ((0,8),(2,10),(4,12),(6,14),(0,4),(2,6)):
            I('v_pk_add_f32 %s, %s, %s'%(v(R+x,2),v(R+x,2),v(R+y,2)))
        I('v_add_f32 v20, %s, %s'%(v(R),v(R+2))); I('v_add_f32 v22, %s, %s'%(v(R+1),v(R+3)))
    sum8()
    if o['dual']:
        I('buffer_store_dwordx4 v[20:23], v31, %s, %s offen'%(s(S_WS,4),s(sT3))); I('s_add_u32 %s, %s, %d'%(s(sT3),s(sT3),BOFF))
    I('buffer_store_dwordx4 v[20:23], v31, %s, %s offen sc1'%(s(S_WS,4),s(sT3)))
    I('s_branch L_x2w')
    a.label('L_ml')
    I('ds_read_b128 %s, v12 offset:%d'%(v(R,4),L_LW)); I('ds_read_b128 %s, v12 offset:%d'%(v(R+4,4),L_LW+16))
    I('s_lshl_b32 %s, %s, 7'%(s(sT3),s(sJ))); I('s_add_u32 %s, %s, %s'%(s(sT3),s(sT3),s(sT2)))
    I('v_mov_b32 v20, %s'%v(vMX))
    I('s_waitcnt lgkmcnt(0)')
    I('v_pk_add_f32 %s, %s, %s'%(v(R,2),v(R,2),v(R+4,2))); I('v_pk_add_f32 %s, %s, %s'%(v(R+2,2),v(R+2,2),v(R+6,2)))
    I('v_pk_add_f32 %s, %s, %s'%(v(R,2),v(R,2),v(R+2,2))); I('v_add_f32 v22, %s, %s'%(v(R),v(R+1)))
    I('s_mov_b64 exec, 0xff')
    if o['dual']:
        I('buffer_store_dwordx4 v[20:23], v31, %s, %s offen'%(s(S_WS,4),s(sT3))); I('s_add_u32 %s, %s, %d'%(s(sT3),s(sT3),BOFF))
    I('buffer_store_dwordx4 v[20:23], v31, %s, %s offen sc1'%(s(S_WS,4),s(sT3)))
    I('s_mov_b64 exec, -1')
    a.label('L_x2w')
    if o['x2wait']: I('s_waitcnt vmcnt(%d)'%0)
    a.label('L_x2')
    I('s_add_u32 %s, %s, 1'%(s(sCNT),s(sCNT)))
    I('s_and_b32 %s, %s, %d'%(s(sT3),s(sCNT),o['bmask2'])); I('s_cselect_b32 %s, 0, %d'%(s(sT3),BOFF))
    I('s_add_u32 %s, %s, %s'%(s(sT0),s(sT3),s(sT1))); I('s_add_u32 %s, %s, %s'%(s(sT3),s(sT3),s(sT2)))
    I('buffer_load_dwordx4 %s, v14, %s, %s offen sc1'%(v(vP,4),s(S_WS,4),s(sT0)))
    I('buffer_load_dwordx4 %s, v15, %s, %s offen sc1'%(v(vP+4,4),s(S_WS,4),s(sT3)))
    I('s_cmp_gt_u32 %s, 200000'%s(sCNT)); I('s_cbranch_scc1 L_fin')
    I('s_waitcnt vmcnt(0)')
    I('v_xor_b32 v16, %s, %s'%(s(sTAG),v(vP+1)))
    for k in (3,5,7): I('v_bitop3_b32 v16, %s, %s, v16 bitop3:0xbe'%(v(vP+k),s(sTAG)))
    I('v_cmp_ne_u32 vcc, 0, v16')
    DPP('v_max_f32',16,vP+4,vP+4,'quad_perm:[1,0,3,2]')
    I('s_nop 1')
    DPP('v_max_f32',16,16,16,'quad_perm:[2,3,0,1]')
    I('v_sub_f32 v16, %s, v16'%v(vP+4))
    I('s_cbranch_vccnz L_x2')
    STAMP(6)
    I('v_mul_f32 v16, %s, v16'%s(sC2)); I('v_exp_f32 v16, v16')
    I('v_mul_f32 v17, v16, %s'%v(vP+6)); I('v_mul_f32 v18, v16, %s'%v(vP)); I('v_mul_f32 v19, v16, %s'%v(vP+2))
    for ctrl in ('quad_perm:[1,0,3,2]','quad_perm:[2,3,0,1]'):
        for k in range(3): DPP('v_add_f32',17+k,17+k,17+k,ctrl)
    I('v_rcp_f32 v17, v17'); I('v_mul_f32 v18, v18, %s'%v(vGT)); I('v_mul_f32 v19, v19, %s'%v(vGT))
    I('v_mul_f32 v18, v17, v18'); I('v_mul_f32 v19, v17, v19')
    I('v_cvt_pk_bf16_f32 v18, v18, v18'); I('v_cvt_pk_bf16_f32 v19, v19, v19')
    I('s_cmp_lt_u32 %s, 43'%s(sHASF))
    for t in range(2):
        for r in range(4): I('v_and_b32 %s, %s, %s'%(v(vK+4*t+r),v(18+t),v(vM+r)))
    I('v_mfma_f32_16x16x32_bf16 v[16:19], %s, %s, 0'%(v(vK,4),v(vWO,4)))
    I('v_mfma_f32_16x16x32_bf16 v[16:19], %s, %s, v[16:19]'%(v(vK+4,4),v(vWO+4,4)))
    I('s_cbranch_scc0 L_nowd2')
    I('v_mfma_f32_16x16x32_bf16 v[16:19], %s, %s, v[16:19]'%(v(vQB,4),v(vWD,4)))
    a.label('L_nowd2')
    I('s_lshl_b32 %s, %s, 9'%(s(sT0),s(sW))); I('v_add_u32 v13, %s, v13'%s(sT0))
    I('v_lshlrev_b32 v12, 10, %s'%v(vL))
    I('s_cmp_lt_u32 %s, 2'%s(sW))
    I('ds_write_b128 v30, v[16:19] offset:%d'%L_AP)
    I('s_waitcnt lgkmcnt(0)'); I('s_barrier')
    STAMP(7)
    I('s_cbranch_scc0 L_cons')
    for w in range(8): I('ds_read_b64 %s, v13 offset:%d'%(v(R+2*w,2),L_AP+w*1024))
    I('s_waitcnt lgkmcnt(0)')
    sum8()
    I('buffer_store_dwordx4 v[20:23], v31, %s, %s offen sc1'%(s(S_WS,4),s(sOFF)))
    I('s_branch L_fin')
    a.label('L_cons')
    I('s_cmp_eq_u32 %s, 2'%s(sW)); I('s_cbranch_scc0 L_fin')
    a.label('L_x3')
    I('buffer_load_dwordx4 %s, v12, %s, %s offen sc1'%(v(vP,4),s(S_WS,4),s(sPB)))
    I('buffer_load_dwordx4 %s, v12, %s, %s offen offset:16 sc1'%(v(vP+4,4),s(S_WS,4),s(sPB)))
    I('s_add_u32 %s, %s, 1'%(s(sCNT),s(sCNT))); I('s_cmp_gt_u32 %s, 400000'%s(sCNT)); I('s_cbranch_scc1 L_fin')
    I('s_waitcnt vmcnt(0)')
    I('v_xor_b32 v16, %s, %s'%(s(sTAG),v(vP+1)))
    for k in (3,5,7): I('v_bitop3_b32 v16, %s, %s, v16 bitop3:0xbe'%(v(vP+k),s(sTAG)))
    I('v_cmp_ne_u32 vcc, 0, v16')
    I('s_nop 4')
    I('s_cbranch_vccnz L_x3')
    STAMP(8)
    allreduce([vP,vP+2,vP+4,vP+6], tmp=16)
    I('v_cvt_pk_bf16_f32 v24, %s, %s'%(v(vP),v(vP+2))); I('v_cvt_pk_bf16_f32 v25, %s, %s'%(v(vP+4),v(vP+6)))
    I('v_mov_b32 v12, 0')
    I('s_mov_b64 exec, 1')
    I('buffer_store_dwordx2 v[24:25], v12, %s, %s offen'%(s(S_OUT,4),s(sC1)))
    I('s_cmp_eq_u32 s2, 0'); I('s_cbranch_scc0 L_fin')
    I('buffer_store_dword v21, v12, %s, 0 offen sc1'%s(S_WS,4))
    a.label('L_fin')
    if stamp:
        NS=10
        I('s_memrealtime %s'%s(sST+2*9,2)); I('s_memtime s[98:99]')
        I('s_getreg_b32 %s, hwreg(HW_REG_XCC_ID)'%s(sT1))
        I('s_getreg_b32 %s, hwreg(HW_REG_HW_ID)'%s(sT2))
        I('v_lshrrev_b32 v8, 6, v0'); I('s_mov_b64 exec, 1'); I('v_readfirstlane_b32 %s, v8'%s(sW))
        I('s_waitcnt lgkmcnt(0)')
        I('s_lshl_b32 %s, s2, 4'%s(sT0)); I('s_add_u32 %s, %s, %s'%(s(sT0),s(sT0),s(sW))); I('s_lshl_b32 %s, %s, 7'%(s(sT0),s(sT0)))
        I('s_add_u32 %s, %s, %d'%(s(sT0),s(sT0),W_ST))
        I('v_mov_b32 v12, 0')
        for k in range(NS):
            I('v_mov_b32 v16, %s'%s(sST+2*k))
            I('buffer_store_dword v16, v12, %s, %s offen offset:%d'%(s(S_WS,4),s(sT0),4*k))
        I('s_sub_u32 s98, s98, s96'); I('v_mov_b32 v16, s98'); I('buffer_store_dword v16, v12, %s, %s offen offset:112'%(s(S_WS,4),s(sT0)))
        I('v_mov_b32 v16, %s'%s(sCNT)); I('buffer_store_dword v16, v12, %s, %s offen offset:108'%(s(S_WS,4),s(sT0)))
        I('v_mov_b32 v16, %s'%s(sT1)); I('buffer_store_dword v16, v12, %s, %s offen offset:120'%(s(S_WS,4),s(sT0)))
        I('v_mov_b32 v16, %s'%s(sT2)); I('buffer_store_dword v16, v12, %s, %s offen offset:124'%(s(S_WS,4),s(sT0)))
    if stamp and o.get('dbg'):
        I('s_load_dwordx2 s[8:9], s[0:1], 88'); I('s_mov_b32 s10, 256'); I('s_mov_b32 s11, 0x20000'); I('s_waitcnt lgkmcnt(0)')
        I('s_cmp_eq_u32 %s, 0'%s(sW)); I('s_cbranch_scc1 L_dq')
        I('s_cmp_eq_u32 %s, 4'%s(sW)); I('s_cbranch_scc0 L_end')
        for k in range(NS):
            I('v_mov_b32 v16, %s'%s(sST+2*k)); I('buffer_atomic_umax v16, v12, s[8:11], 0 offen offset:%d'%(4*k))
        for q,k in enumerate((0,5,9)):
            I('s_not_b32 %s, %s'%(s(sT0),s(sST+2*k))); I('v_mov_b32 v16, %s'%s(sT0)); I('buffer_atomic_umax v16, v12, s[8:11], 0 offen offset:%d'%(40+4*q))
        I('v_mov_b32 v16, s98'); I('buffer_atomic_umax v16, v12, s[8:11], 0 offen offset:52')
        I('s_branch L_end')
        a.label('L_dq')
        for q,k in enumerate((3,4)):
            I('v_mov_b32 v16, %s'%s(sST+2*k)); I('buffer_atomic_umax v16, v12, s[8:11], 0 offen offset:%d'%(56+4*q))
    a.label('L_end')
    I('s_endpgm')
    return a, LDS_BYTES, 640

def wrap(lines, nv, ns, lds, block, align=True):
    acc=(nv+3)//4*4
    out=HDR+'; @launch grid=(256,1,1) block=(%d,1,1) lds=%d\n'%(block,lds)
    out+='.amdgcn_target "amdgcn-amd-amdhsa--gfx950"\n.text\n.globl %s_kernel\n'%NAME
    if align: out+='.p2align 12\n.fill 832, 4, 0xbf800000\n'
    out+='.p2align 8\n.type %s_kernel,@function\n%s_kernel:\n'%(NAME,NAME)
    out+='\n'.join(lines)+'\n'
    out+='''.section .rodata,"a"
.p2align 6
.amdhsa_kernel %s_kernel
  .amdhsa_next_free_vgpr %d
  .amdhsa_next_free_sgpr %d
  .amdhsa_accum_offset %d
  .amdhsa_group_segment_fixed_size 0
  .amdhsa_kernarg_size 104
  .amdhsa_user_sgpr_count 2
  .amdhsa_user_sgpr_kernarg_segment_ptr 1
  .amdhsa_system_sgpr_workgroup_id_x 1
.end_amdhsa_kernel
'''%(NAME,nv,ns,acc)
    return out

def sizes(lines):
    src='.amdgcn_target "amdgcn-amd-amdhsa--gfx950"\n.text\n'+'\n'.join(lines)+'\n'+'\n'.join('L_pad%d:'%p for p in range(16) if ('L_pad%d:'%p) not in lines)+'\ns_endpgm\n'
    open('_sz.s','w').write(src)
    subprocess.check_call([CL+'clang','-x','assembler','-target','amdgcn-amd-amdhsa','-mcpu=gfx950','-c','_sz.s','-o','_sz.o'])
    dis=subprocess.check_output([CL+'llvm-objdump','-d','--mcpu=gfx950','_sz.o'],text=True)
    addrs=[int(m.group(1),16) for m in re.finditer(r'// ([0-9A-F]{12}):',dis)]
    out=[]; k=0
    for l in lines:
        t=l.strip()
        if not t or t.startswith(';') or t.endswith(':'): out.append(0)
        else: out.append(addrs[k+1]-addrs[k]); k+=1
    return out

def gen(stamp=False, opts=None, bodyf=body):
    o=dict(nt=True, prio=True, b0=False, pads=True, pdelay=0, align=True, padstep=1024, D=3, first=1, dual=True, bmask=3, bmask2=7, warm2=True, x2wait=True)
    o.update(opts or {})
    a,lds,block=bodyf(stamp,o,0)
    lines=a.lines
    if o['pads']:
        tot=sum(sizes(lines)); npads=min(8,(tot+64)//o['padstep'])
        a,lds,block=bodyf(stamp,o,npads)
        lines=list(a.lines); sz=sizes(lines)
        out=[]; addr=0; p=0
        for l,z in zip(lines,sz):
            if p<npads and z and addr>=o['padstep']*(p+1):
                out.append('L_pad%d:'%p); out.append('    s_cbranch_execz L_back'); addr+=4; p+=1
            out.append(l); addr+=z
        assert p==npads, (p,npads)
        lines=out
    nv=a.maxv+1; ns=max(a.maxs+1,16)
    info=dict(nv=nv,ns=ns,nops=a.nops,bytes=sum(sizes(lines)))
    z=sizes(lines); ad=0
    for l,k in zip(lines,z):
        if l.endswith(':'): info[l[:-1]]=ad
        ad+=k
    return wrap(lines,nv,ns,lds,block,o['align']),info

if __name__=='__main__':
    import argparse, json
    ap=argparse.ArgumentParser(); ap.add_argument('-o',required=True); ap.add_argument('--stamp',action='store_true')
    ap.add_argument('--opts',default='{}')
    ar=ap.parse_args()
    t,info=gen(stamp=ar.stamp,opts=json.loads(ar.opts))
    open(ar.o,'w').write(t); print(info)
```
